```python
import torch

def _softmax(x, axis=-1):
    return torch.softmax(x, dim=axis)
def _gelu(x):
    return torch.nn.functional.gelu(x, approximate="tanh")
def _silu(x):
    return torch.nn.functional.silu(x)
def _sigmoid(x):
    return torch.sigmoid(x)
def _layernorm(x, axis=-1, eps=1e-5):
    m = x.mean(dim=axis, keepdim=True)
    v = x.var(dim=axis, keepdim=True, unbiased=False)
    return (x - m) / torch.sqrt(v + eps)
def _scatter_add(tgt, idx, src, axis=0):
    return tgt.clone().index_add_(axis, idx, src)
def _segment_sum(src, seg, n):
    out = torch.zeros((n,) + src.shape[1:], dtype=src.dtype)
    return out.index_add_(0, seg, src)
def _pad(x, pw):
    flat = tuple(v for pair in reversed(pw) for v in pair)
    return torch.nn.functional.pad(x, flat)

kernel_name = 'standalone__mha_softmax__near_ridge'

def setup_inputs():

    _w = (lambda a: (lambda t: t.to(torch.bfloat16) if t.is_floating_point() else t)(torch.as_tensor(a)))
    B, H, Sq, Sk, D = 16, 32, 848, 512, 128
    return {
        "q": _w((lambda *s: torch.randn(*s, dtype=torch.bfloat16) * 0.8)(B, H, Sq, D)),
        "k": _w((lambda *s: torch.randn(*s, dtype=torch.bfloat16) * 0.8)(B, H, Sk, D)),
        "v": _w((lambda *s: torch.randn(*s, dtype=torch.bfloat16) * 0.05)(B, H, Sk, D)),
    }

def reference(q, k, v):
    scale = q.shape[-1] ** -0.5
    scores = torch.einsum("bhqd,bhkd->bhqk", q, k) * scale
    p = _softmax(scores, axis=-1)
    return torch.einsum("bhqk,bhkd->bhqd", p, v)
```

```python
import math
import random
import re

COST = {'mfma': 8, 'valu': 4, 'trans': 8, 'ds': 4, 'vmem': 8, 'salu': 4, 'wait': 4, 'bar': 4, 'branch': 4,
        'label': 0, 'nop': 4}


def regs(kind, base, n=1):
    return [f'{kind}{base + i}' for i in range(n)]


def rng(kind, base, n):
    return f'{kind}{base}' if n == 1 else f'{kind}[{base}:{base + n - 1}]'


class Op:
    def __init__(self, text, kind, rd=(), wr=(), lo=0, hi=10 ** 9, tgt=None, deps=(), rtag=None, wtag=None,
                 needs=None, vmclass=None, lds_r=None, lds_w=None, name='', soft=0.0):
        self.text, self.kind = text, kind
        self.rd, self.wr = list(rd), list(wr)
        self.lo, self.hi = lo, hi
        self.tgt = tgt if tgt is not None else lo
        self.deps = list(deps)
        self.rtag, self.wtag = rtag or {}, wtag or {}
        self.needs = needs
        self.vmclass = vmclass
        self.lds_r, self.lds_w = lds_r, lds_w
        self.name = name
        self.soft = soft
        self.gap = None
        self.n = None

    @property
    def cost(self):
        return COST[self.kind]

    def render(self):
        if self.kind == 'wait' and self.needs is not None:
            return f's_waitcnt lgkmcnt({self.n})'
        if self.kind == 'wait' and self.vmclass is not None:
            return f's_waitcnt vmcnt({self.n})'
        return self.text


LAT = 7
ORDER = {'wait': 1, 'bar': 1, 'ds': 0, 'vmem': 0, 'salu': 2, 'valu': 3, 'trans': 3, 'branch': 9, 'nop': 3}


def schedule(backbone, fillers, lag=2, reserve_last=(), anneal=0, seed=1):
    n = len(backbone)
    for f in fillers:
        f.gap = None
        if f.hi >= n:
            f.hi = n - 1
    changed = True
    while changed:
        changed = False
        for f in fillers:
            for d, dist in f.deps:
                lim = f.hi - (1 if dist > 0 or d.kind == 'trans' else 0)
                if f.kind == 'wait' and d.kind == 'ds':
                    lim = f.hi - LAT
                if dist > 2:
                    lim = f.hi - (dist + 1) // 2
                if d.hi > lim:
                    d.hi = lim
                    changed = True
    for f in fillers:
        if f.tgt > f.hi:
            f.tgt = f.hi
        assert f.lo <= f.hi, (f.text, f.name, f.lo, f.hi)
    pend = list(fillers)
    out = []
    pos = {}
    gaps = []
    for g in range(n):
        out.append(backbone[g])
        cur = []
        cost = 0
        last = (g == n - 1)

        def ready(f):
            if f.lo > g:
                return False
            for d, dist in f.deps:
                if d.gap is None:
                    return False
                if f.kind == 'wait' and d.kind == 'ds' and g - d.gap < LAT:
                    return False
                if d.gap == g:
                    if dist > 0 or d.kind == 'trans':
                        return False
                    if ORDER[d.kind] > ORDER[f.kind] and not (d.kind in ('wait', 'bar')):
                        return False
                elif len(out) - pos[d] - 1 + 0 < dist:
                    return False
            if f.kind == 'vmem' and any(c.kind in ('vmem', 'ds') for c in cur):
                return False
            if f.kind == 'ds' and any(c.kind == 'vmem' for c in cur):
                return False
            return True

        while True:
            cand = [f for f in pend if ready(f)]
            if not cand:
                break
            must = [f for f in cand if f.hi <= g]
            pick = None
            if must:
                pick = min(must, key=lambda f: (f.hi, f.tgt))
            elif last and reserve_last:
                break
            else:
                late = [f for f in cand if f.tgt < g - lag]
                if cost >= 8:
                    if not late:
                        break
                    pick = min(late, key=lambda f: f.tgt)
                else:
                    fit = [f for f in cand if cost + f.cost <= 8]
                    fit = [f for f in fit if f.kind not in ('wait', 'bar') or f.tgt <= g]
                    if cost == 0:
                        best = min(fit, key=lambda f: f.tgt) if fit else None
                        if best is not None and best.cost == 4:
                            partners = [f for f in fit if f is not best and f.cost == 4]
                            eight = [f for f in fit if f.cost == 8]
                            if not partners and eight:
                                best = min(eight, key=lambda f: f.tgt)
                        pick = best
                    else:
                        pick = min(fit, key=lambda f: f.tgt) if fit else None
                        if pick is None:
                            rest = [f for f in cand if f.kind not in ('wait', 'bar') and f.tgt <= g]
                            pick = min(rest, key=lambda f: f.tgt) if rest else None
                    if pick is None:
                        break
            pick.gap = g
            cur.append(pick)
            cost += pick.cost
            pend.remove(pick)
        cur.sort(key=lambda f: ORDER[f.kind])
        ordered = []
        todo = list(cur)
        while todo:
            for f in todo:
                if all(d not in todo for d, _ in f.deps):
                    ordered.append(f)
                    todo.remove(f)
                    break
            else:
                raise RuntimeError('cyclic deps in gap')
        if last:
            ordered += list(reserve_last)
        for f in ordered:
            pos[f] = len(out)
            out.append(f)
        gaps.append(ordered)
    assert not pend, [(f.text, f.name, f.lo, f.hi) for f in pend]
    if anneal:
        improve(n, fillers, anneal, sum(o.cost for o in reserve_last), seed)
    return emit(backbone, fillers, reserve_last)


def same_gap_ok(d, dist, f):
    if dist > 0 or d.kind == 'trans':
        return False
    return ORDER[d.kind] <= ORDER[f.kind] or d.kind in ('wait', 'bar')


def improve(n, fillers, iters, lastcost, seed):
    rnd = random.Random(seed)
    users = {id(f): [] for f in fillers}
    for f in fillers:
        for d, dist in f.deps:
            users[id(d)].append((f, dist))
    def mind(d, dist, f):
        if f.kind == 'wait' and d.kind == 'ds':
            return LAT
        return 0 if same_gap_ok(d, dist, f) else 1
    pre = {id(f): [(d, mind(d, dist, f)) for d, dist in f.deps] for f in fillers}
    post = {id(f): [(u, mind(f, dist, u)) for u, dist in users[id(f)]] for f in fillers}
    inq = [[] for _ in range(n)]
    for f in fillers:
        inq[f.gap].append(f)
    load = [0] * n
    nv = [0] * n
    nd = [0] * n
    load[n - 1] += lastcost
    for f in fillers:
        load[f.gap] += f.cost
        nv[f.gap] += f.kind == 'vmem'
        nd[f.gap] += f.kind == 'ds'
    vm = [f for f in fillers if f.kind == 'vmem']

    def iso():
        gs = sorted(f.gap for f in vm)
        return 8 * sum(1 for i, g in enumerate(gs) if i == 0 or g - gs[i - 1] > 7)

    def window(f):
        lo, hi = f.lo, f.hi
        for d, k in pre[id(f)]:
            if d.gap + k > lo:
                lo = d.gap + k
        for u, k in post[id(f)]:
            if u.gap - k < hi:
                hi = u.gap - k
        return lo, hi

    def fits(f, g):
        if f.kind == 'vmem':
            return nv[g] == 0 and nd[g] == 0
        if f.kind == 'ds':
            return nv[g] == 0
        return True

    def move(f, g):
        o = f.gap
        inq[o].remove(f)
        inq[g].append(f)
        load[o] -= f.cost
        load[g] += f.cost
        if f.kind == 'vmem':
            nv[o] -= 1
            nv[g] += 1
        elif f.kind == 'ds':
            nd[o] -= 1
            nd[g] += 1
        f.gap = g

    def gc(g):
        x = load[g]
        return max(8, x) + (0.05 * (x - 12) if x > 12 else 0)

    def soft(f, g):
        return f.soft * abs(g - f.tgt)

    cur_iso = iso()
    total = sum(gc(g) for g in range(n)) + cur_iso + sum(soft(f, f.gap) for f in fillers)
    best, best_gaps = total, [f.gap for f in fillers]
    for it in range(iters):
        T = 1.0 * (1 - it / iters) ** 3 + 0.004
        f = fillers[rnd.randrange(len(fillers))]
        lo, hi = window(f)
        if lo >= hi:
            continue
        o = f.gap
        g = rnd.randint(max(lo, o - 6), min(hi, o + 6))
        if g == o:
            continue
        other = None
        if rnd.random() < 0.6:
            c = inq[g]
            if c:
                other = c[rnd.randrange(len(c))]
        before = gc(o) + gc(g) + soft(f, o) + (soft(other, g) if other else 0)
        if other is None:
            if not fits(f, g):
                continue
            move(f, g)
        else:
            if any(d is other for d, _ in f.deps) or any(d is f for d, _ in other.deps):
                continue
            l2, h2 = window(other)
            if not l2 <= o <= h2:
                continue
            move(f, g)
            move(other, o)
            if nv[g] > 1 or nv[o] > 1 or (nv[g] and nd[g]) or (nv[o] and nd[o]):
                move(f, o)
                move(other, g)
                continue
        new_iso = iso() if (f.kind == 'vmem' or (other and other.kind == 'vmem')) else cur_iso
        delta = gc(o) + gc(g) + soft(f, g) + (soft(other, o) if other else 0) - before + new_iso - cur_iso
        if delta <= 0 or rnd.random() < math.exp(-delta / T):
            total += delta
            cur_iso = new_iso
            if total < best - 1e-9:
                best, best_gaps = total, [x.gap for x in fillers]
        else:
            move(f, o)
            if other:
                move(other, g)
    for f, g in zip(fillers, best_gaps):
        f.gap = g


def emit(backbone, fillers, reserve_last):
    n = len(backbone)
    out = []
    pos = {}
    for g in range(n):
        out.append(backbone[g])
        todo = sorted([f for f in fillers if f.gap == g], key=lambda f: (ORDER[f.kind], f.tgt))
        ordered = []
        while todo:
            for f in todo:
                if all(d not in todo for d, _ in f.deps):
                    ordered.append(f)
                    todo.remove(f)
                    break
            else:
                raise RuntimeError('cyclic deps in gap')
        if g == n - 1:
            ordered += list(reserve_last)
        for f in ordered:
            pos[f] = len(out)
            out.append(f)
    for i, op in enumerate(out):
        if op.kind == 'wait' and op.needs is not None:
            lastneed = max([pos[d] for d in op.needs], default=-1)
            assert lastneed < i
            op.n = sum(1 for o in out[lastneed + 1:i] if o.kind == 'ds')
            assert op.n <= 15, ('lgkmcnt too large', op.name, op.n)
    return out


def model_cycles(seq):
    total = 0
    cur = None
    under = 0
    prev = None
    for op in seq:
        if op.kind == 'mfma':
            if cur is not None:
                total += max(16, cur)
                under += max(0, 16 - cur)
            cur = 8
        else:
            c = op.cost
            if op.kind in ('ds', 'vmem') and prev is not None and prev.kind in ('valu', 'trans'):
                c += 8
            if cur is None:
                total += c
            else:
                cur += c
        prev = op
    if cur is not None:
        total += max(16, cur)
        under += max(0, 16 - cur)
    return total, under


PASS_KINDS = ('Q', 'OST', 'X', 'LX', 'OT', 'L')


def shift(tag, ctx):
    p, it = ctx
    kind = tag[0]
    if kind.endswith('i'):
        return (kind[:-1], tag[1] + p, tag[2] + 2 * it) + tuple(tag[3:])
    if kind in PASS_KINDS:
        return (kind, tag[1] + p) + tuple(tag[2:])
    return (kind, tag[1] + 16 * p + 4 * it) + tuple(tag[2:])


def keyof(key, ctx):
    if key[0].endswith('i'):
        return (key[0][:-1], key[1] + 2 * ctx[1])
    return key[0:2]


def check_trace(trace, name=''):
    errs = []
    tags = {}
    last_w = {}
    last_c = {}
    last_st = {}
    ds_q = []
    vm_q = []
    pend = {}
    lds = {}
    nbar = 0
    for i, (op, sh) in enumerate(trace):
        if op.kind == 'label':
            continue
        if op.kind == 'wait':
            t = op.render()
            m = re.search(r'lgkmcnt\((\d+)\)', t)
            if m:
                k = int(m.group(1))
                while len(ds_q) > k:
                    j, o, c = ds_q.pop(0)
                    for r in o.wr:
                        if pend.get(r) == j:
                            del pend[r]
                    for key in (o.lds_r or []):
                        st = lds.setdefault(keyof(key, c), {})
                        st['rd_out'] = st.get('rd_out', 0) - 1
                        st['rd_done_bar'] = nbar
                    for key in (o.lds_w or []):
                        st = lds.setdefault(keyof(key, c), {})
                        st['w_out'] = st.get('w_out', 0) - 1
                        st['w_done_bar'] = nbar
            m = re.search(r'vmcnt\((\d+)\)', t)
            if m:
                k = int(m.group(1))
                while len(vm_q) > k:
                    j, o, c = vm_q.pop(0)
                    for r in o.wr:
                        if pend.get(r) == j:
                            del pend[r]
                    for key in (o.lds_w or []):
                        st = lds.setdefault(keyof(key, c), {})
                        st['dma_out'] = st.get('dma_out', 0) - 1
                        st['w_done_bar'] = nbar
            continue
        if op.kind == 'bar':
            nbar += 1
            continue
        for r in op.rd + op.wr:
            if r in pend and not (r == 'v53'):
                errs.append(f'{i}: {op.render()} touches {r} with a load in flight')
        for r, t in op.rtag.items():
            want = shift(t, sh)
            if want[0] in ('OT',) and want[1] < 0:
                continue
            if tags.get(r) != want:
                errs.append(f'{i}: {op.render()} reads {r}: have {tags.get(r)} want {want}')
        def dist(j):
            return sum(1 if o.kind != 'nop' else o.nstates for o, _ in trace[j + 1:i] if o.kind != 'label')
        for r in op.rd:
            if r in last_w:
                j, w = last_w[r]
                if i - j > 40:
                    continue
                need = 0
                if w.kind == 'mfma':
                    big = 12 if 'smfmac' in w.text else 8
                    if op.kind == 'mfma':
                        isc = r in getattr(op, 'cregs', [])
                        need = 0 if (isc and op.wr == w.wr) else big
                    else:
                        need = big
                elif w.kind in ('valu', 'trans'):
                    if op.kind == 'mfma':
                        need = 2
                    elif w.kind == 'trans' and op.kind == 'valu':
                        need = 1
                    elif r[0] == 's' or r == 'vcc':
                        need = 5
                    elif 'readfirstlane' in op.text or 'readlane' in op.text:
                        need = 1
                    elif 'permlane' in op.text:
                        need = 2
                elif w.kind == 'salu' and r == 'm0':
                    need = 1
                if need and dist(j) < need:
                    errs.append(f'{i}: {op.render()} reads {r} {dist(j)} states after {w.render()} (needs {need})')
        for r in op.wr:
            if r in last_w:
                j, w = last_w[r]
                if i - j <= 40 and w.kind == 'mfma' and op.kind != 'mfma':
                    big = 12 if 'smfmac' in w.text else 8
                    if dist(j) < big:
                        errs.append(f'{i}: {op.render()} overwrites {r} {dist(j)} states after {w.render()}')
                if i - j <= 40 and w.kind == 'mfma' and op.kind == 'mfma' and op.wr != w.wr and dist(j) < 8:
                    errs.append(f'{i}: {op.render()} WAW {r} after {w.render()}')
            if r in last_c and op.kind in ('valu', 'trans') and i - last_c[r] <= 40 and dist(last_c[r]) < 7:
                errs.append(f'{i}: {op.render()} overwrites SrcC {r} too early')
            if r in last_st and i - last_st[r] <= 40 and dist(last_st[r]) < 2:
                errs.append(f'{i}: {op.render()} overwrites store data {r} too early')
        for key in (op.lds_r or []):
            st = lds.setdefault(keyof(key, sh), {})
            if st.get('dma_out', 0) > 0:
                errs.append(f'{i}: {op.render()} reads LDS {key} while a DMA is in flight')
            if key[2] and (st.get('w_out', 0) > 0 or st.get('w_done_bar', -1) >= nbar):
                errs.append(f'{i}: {op.render()} reads shared LDS {key} without a barrier after the write')
            if key[3] is not None and st.get('tag') != shift(key[3], sh) and not (
                    shift(key[3], sh)[0] == 'OST' and shift(key[3], sh)[1] < 0):
                errs.append(f'{i}: {op.render()} reads LDS {key}: have {st.get("tag")} want {shift(key[3], sh)}')
            st['rd_out'] = st.get('rd_out', 0) + 1
            st['rd_shared'] = st.get('rd_shared', False) or key[2]
        for key in (op.lds_w or []):
            st = lds.setdefault(keyof(key, sh), {})
            newtag = shift(key[3], sh) if key[3] is not None else None
            if st.get('tag') != newtag:
                if op.kind == 'vmem' and st.get('rd_out', 0) > 0:
                    errs.append(f'{i}: {op.render()} DMA into LDS {key} with reads outstanding')
                if op.kind == 'vmem' and st.get('w_out', 0) > 0:
                    errs.append(f'{i}: {op.render()} DMA into LDS {key} with writes outstanding')
                if op.kind == 'ds' and st.get('dma_out', 0) > 0:
                    errs.append(f'{i}: {op.render()} LDS write {key} with DMA outstanding')
                if st.get('rd_shared') and (st.get('rd_out', 0) > 0 or st.get('rd_done_bar', -1) >= nbar):
                    errs.append(f'{i}: {op.render()} overwrites shared LDS {key} without a barrier after the reads')
                st['rd_shared'] = False
            st['tag'] = newtag
            if op.kind == 'vmem':
                st['dma_out'] = st.get('dma_out', 0) + 1
            else:
                st['w_out'] = st.get('w_out', 0) + 1
        if op.kind == 'ds':
            ds_q.append((i, op, sh))
            for r in op.wr:
                pend[r] = i
        elif op.kind == 'vmem':
            vm_q.append((i, op, sh))
            if len(vm_q) > 63:
                errs.append(f'{i}: more than 63 VMEM ops outstanding')
            for r in op.wr:
                pend[r] = i
            if 'store' in op.text:
                for r in op.rd[:4]:
                    last_st[r] = i
        else:
            for r in op.wr:
                last_w[r] = (i, op)
        if op.kind in ('ds', 'vmem'):
            for r in op.wr:
                last_w.pop(r, None)
        for r in getattr(op, 'cregs', []):
            last_c[r] = i
        for r in op.wr:
            tags.pop(r, None)
        for r, t in op.wtag.items():
            tags[r] = shift(t, sh)
    if errs:
        print(f'== {name}: {len(errs)} problems')
        for e in errs[:40]:
            print('   ', e)
    return errs


def resolve_vm_waits(traces):
    for tr in traces:
        for op, _ in tr:
            if op.kind == 'wait' and op.vmclass is not None:
                op.n = 63
    for tr in traces:
        seq = []
        for op, _ in tr:
            if op.kind == 'vmem':
                seq.append(op.vmclass)
            elif op.kind == 'wait' and op.vmclass is not None:
                k = 0
                found = False
                for c in reversed(seq):
                    if c == op.vmclass or op.vmclass == 'all':
                        found = True
                        break
                    k += 1
                if found:
                    op.n = min(op.n, k)
```

```python
import re
import struct
import sys
from sched import Op, regs, rng, schedule, model_cycles, check_trace, resolve_vm_waits

NAME = 'standalone__mha_softmax__near_ridge_kernel'
QH = 848 * 256
KH = 512 * 256
QBYTES = 512 * QH
OOB = 0x80000000

CFG = dict(pf=True, pf_ahead=5, q_nt=False, o_nt=False, kv_nt=False, tries=1, anneal=150000, slow=True, stamp=False)

vS = [0, 8]
vP = [16, 20, 24]
vSA = 28
vD = [32, 36, 40, 44]
vIDX, vDMA, vQR, vLIN, vPF, vDUM, vT, vCHK = 48, 49, 50, 51, 52, 53, 54, 55
vK = [[56, 57], [58, 59]]
vV = [[60, 61], [62, 63]]


def Oreg(u):
    return ('v', 64 + 32 * u) if u < 6 else ('a', 112)


def aQ(u):
    return 16 * u


aK = 144
aV = [176, 208]
aT = 240

sK = [4, 8]
sV = [12, 16]
sQd = [20, 24, 28, 32]
sOd = 36
sPFd = 40
sKV, sPF, sQ, sQL, sO, sQM = 44, 45, 46, 47, 48, 49
sM0 = [50, 51, 52, 53]
sSTG, sLOOP, sPASS, sC, sLO, sRANGE, sFAIL, sW = 54, 55, 56, 57, 58, 59, 60, 61
sCUR = {'A': 62, 'B': 63}
sLATE = {'A': 64, 'B': 65}
sROLE, sH0 = 66, 67
sT0, sT1, sT2, sT3 = 68, 69, 70, 71
sTS = 72

STG = 65536
SLOT = 16384

_REG = re.compile(r'\b([vas])(\d+)\b|\b([vas])\[(\d+):(\d+)\]|\b(m0|vcc|exec)\b')


def _parse(operand):
    out = []
    for m in _REG.finditer(operand):
        if m.group(1):
            out.append(m.group(1) + m.group(2))
        elif m.group(3):
            out += regs(m.group(3), int(m.group(4)), int(m.group(5)) - int(m.group(4)) + 1)
        else:
            out.append(m.group(6))
    return out


def mk(text, **kw):
    mn, _, rest = text.partition(' ')
    ops = [o.strip() for o in rest.split(',')] if rest else []
    allr = [_parse(o) for o in ops]
    flat = lambda l: [r for x in l for r in x]
    cregs = []
    if mn.startswith('v_mfma'):
        kind, wr, rd = 'mfma', allr[0], flat(allr[1:])
        cregs = allr[3]
    elif mn.startswith('v_smfmac'):
        kind, wr, rd = 'mfma', allr[0], flat(allr)
        cregs = allr[0]
    elif mn.startswith('v_'):
        kind = 'trans' if re.match(r'v_(exp|rcp|log|rsq|sqrt)_', mn) else 'valu'
        wr, rd = allr[0], flat(allr[1:])
        if 'permlane' in mn:
            wr = rd = flat(allr)
        if mn.startswith('v_cndmask') and 'vcc' not in rd and len(ops) < 4:
            rd = rd + ['vcc']
    elif mn.startswith('ds_read'):
        kind, wr, rd = 'ds', allr[0], flat(allr[1:])
    elif mn.startswith('ds_'):
        kind, wr, rd = 'ds', [], flat(allr)
    elif mn.startswith('buffer_load') and ' lds' in text:
        kind, wr, rd = 'vmem', [], flat(allr) + ['m0']
    elif mn.startswith('buffer_load'):
        kind, wr, rd = 'vmem', allr[0], flat(allr[1:])
    elif mn.startswith('buffer_store'):
        kind, wr, rd = 'vmem', [], flat(allr)
    elif mn == 's_waitcnt':
        kind, wr, rd = 'wait', [], []
    elif mn == 's_barrier':
        kind, wr, rd = 'bar', [], []
    elif mn == 's_nop':
        kind, wr, rd = 'nop', [], []
    elif mn.startswith('s_cbranch') or mn in ('s_branch', 's_endpgm'):
        kind, wr, rd = 'branch', [], []
    elif mn.startswith('s_cmp'):
        kind, wr, rd = 'salu', [], flat(allr)
    elif mn.startswith('s_'):
        kind, wr, rd = 'salu', allr[0], flat(allr[1:])
    elif mn.endswith(':') or mn.startswith('.') or mn.startswith(';'):
        kind, wr, rd = 'label', [], []
    else:
        raise ValueError(text)
    op = Op(text, kind, rd=rd, wr=wr, **kw)
    op.cregs = cregs
    if kind == 'nop':
        op.nstates = int(rest) + 1
    return op


def lgkm(needs, **kw):
    return Op('', 'wait', needs=list(needs), **kw)


def vmw(cls, **kw):
    return Op('', 'wait', vmclass=cls, **kw)


class Step:
    def __init__(self, typ, t, u):
        self.typ, self.t, self.u = typ, t, u
        tt = t % 16
        self.half = (typ == 'B' and u == 6)
        pos = units(typ, tt).index(u)
        idx = 7 * tt + pos if typ == 'A' else 13 * (tt >> 1) + 7 * (tt & 1) + pos
        self.sb = vS[idx & 1]
        self.pb = vP[2] if u == 6 else vP[u & 1]
        self.ne = 4 if self.half else 8
        self.first = (tt == 0)
        self.qp = 0 if 0 <= t < 16 else (1 if t >= 16 else -1)
        self.prev_t = t - 2 if self.half else t - 1


def units(typ, t):
    if typ == 'A':
        return list(range(7))
    return [0, 1, 6, 2, 3, 4, 5] if t % 2 == 0 else list(range(6))


def other(typ):
    return 'B' if typ == 'A' else 'A'


def step_before(typ, t, u):
    us = units(typ, t)
    if us.index(u) > 0:
        return Step(typ, t, us[us.index(u) - 1])
    if t > 0:
        return Step(typ, t - 1, units(typ, t - 1)[-1])
    return Step(other(typ), -1, units(other(typ), 15)[-1])


def step_after(typ, t, u):
    us = units(typ, t)
    if u != us[-1]:
        return Step(typ, t, us[us.index(u) + 1])
    if t < 15:
        return Step(typ, t + 1, 0)
    return Step(other(typ), 16, 0)


def qk_ops(st):
    out = []
    for kb in range(1 if st.half else 2):
        d = rng('v', st.sb + 4 * kb, 4)
        for ds in range(4):
            ka, qa = aK + 16 * kb + 4 * ds, aQ(st.u) + 4 * ds
            op = mk(f'v_mfma_f32_16x16x32_bf16 {d}, {rng("a", ka, 4)}, {rng("a", qa, 4)}, {d if ds else 0}',
                    rtag={f'a{ka}': ('K', st.t, kb, ds), f'a{qa}': ('Q', st.qp, st.u, ds)})
            if ds == 3:
                op.wtag = {f'v{st.sb + 4 * kb + e}': ('S', st.t, st.u, 4 * kb + e) for e in range(4)}
            out.append(op)
    return out


def ptags(st):
    tg = {f'v{st.pb + k}': ('P', st.t, st.u, k) for k in range(st.ne // 2)}
    if st.half:
        tg.update({f'v{st.pb + k}': ('L', st.qp, 'zero') for k in (2, 3)})
    return tg


def pv_ops(st):
    out = []
    kind, base = Oreg(st.u)
    for blk in range(8):
        d = rng(kind, base + 4 * blk, 4)
        va = aV[st.t & 1] + 4 * blk
        rt = {f'a{va}': ('V', st.t, blk, 0), f'a{va + 2}': ('V', st.t, blk, 1)}
        rt.update(ptags(st))
        if not st.first:
            rt[f'{kind}{base + 4 * blk}'] = ('O', st.prev_t, st.u, blk)
        out.append(mk(f'v_mfma_f32_16x16x32_bf16 {d}, {rng("a", va, 4)}, {rng("v", st.pb, 4)}, {0 if st.first else d}',
                      rtag=rt, wtag={f'{kind}{base + 4 * blk}': ('O', st.t, st.u, blk)}))
    return out


def smf_op(st):
    if st.u not in (1, 3, 5, 6):
        return None
    pair = st.u >> 1
    b = vP[1] if st.u == 6 else vP[0]
    rt = dict(ptags(st))
    if st.u != 6:
        rt.update(ptags(Step(st.typ, st.t, st.u - 1)))
    rt[f'v{vD[pair]}'] = ('L', st.qp, 'dz') if st.first else ('D', st.prev_t, pair)
    return mk(f'v_smfmac_f32_16x16x64_bf16 {rng("v", vD[pair], 4)}, {rng("v", vSA, 4)}, {rng("v", b, 8)}, v{vIDX}',
              rtag=rt, wtag={f'v{vD[pair]}': ('D', st.t, pair)})


def m_op(st, e, **kw):
    r = f'v{st.sb + e}'
    return mk(f'v_mul_f32 {r}, s{sC}, {r}', rtag={r: ('S', st.t, st.u, e)}, wtag={r: ('M', st.t, st.u, e)}, **kw)


def e_op(st, e, **kw):
    r = f'v{st.sb + e}'
    return mk(f'v_exp_f32 {r}, {r}', rtag={r: ('M', st.t, st.u, e)}, wtag={r: ('E', st.t, st.u, e)}, **kw)


def c_op(st, k, **kw):
    a, b = f'v{st.sb + 2 * k}', f'v{st.sb + 2 * k + 1}'
    return mk(f'v_cvt_pk_bf16_f32 v{st.pb + k}, {a}, {b}',
              rtag={a: ('E', st.t, st.u, 2 * k), b: ('E', st.t, st.u, 2 * k + 1)},
              wtag={f'v{st.pb + k}': ('P', st.t, st.u, k)}, **kw)


def kvkeys(t):
    return [('kv', (t & 2) + j, True, ('KV', (t & ~1) + j)) for j in (0, 1)]


def k_read(t, kb, ds, **kw):
    ka = aK + 16 * kb + 4 * ds
    off = ((t >> 1) & 1) * 32768 + (ds >> 1) * 4096 + (ds & 1) * 1024
    return mk(f'ds_read_b128 {rng("a", ka, 4)}, v{vK[t & 1][kb]} offset:{off}', wtag={f'a{ka}': ('K', t, kb, ds)},
              lds_r=kvkeys(t), **kw)


def v_read(t, blk, kb, **kw):
    m, b = blk >> 1, blk & 1
    va = aV[t & 1] + 4 * blk + 2 * kb
    off = ((t >> 1) & 1) * 32768 + (m >> 1) * 4096 + 2048 + (m & 1) * 1024 + 8 * b
    return mk(f'ds_read_b64_tr_b16 {rng("a", va, 2)}, v{vV[t & 1][kb]} offset:{off}',
              wtag={f'a{va}': ('V', t, blk, kb)}, lds_r=kvkeys(t), **kw)


def nt(flag):
    return ' nt' if CFG[flag] else ''


def kv_dma(t, k, **kw):
    srd = [sK[0], sK[1], sV[0], sV[1]][k]
    return mk(f'buffer_load_dwordx4 v{vDMA}, {rng("s", srd, 4)}, s{sKV} offen offset:{1024 * k}{nt("kv_nt")} lds',
              vmclass='kv', lds_w=[('kv', t & 3, True, ('KV', t))], **kw)


def q_dma(x, soff, key, cls, **kw):
    return mk(f'buffer_load_dwordx4 v{vDMA}, {rng("s", sQd[x], 4)}, s{soff} offen offset:{1024 * x}{nt("q_nt")} lds',
              vmclass=cls, lds_w=[key], **kw)


def q_read(u, slot, x, qp, **kw):
    qa = aQ(u) + 4 * x
    return mk(f'ds_read_b128 {rng("a", qa, 4)}, v{vQR} offset:{slot * 4096 + x * 1024}',
              wtag={f'a{qa}': ('Q', qp, u, x)}, lds_r=[('stg', slot, False, ('Q', qp, u))], **kw)


def o_store(reg, x, soff, **kw):
    return mk(f'buffer_store_dwordx4 {rng("a", reg, 4)}, v{vDMA}, {rng("s", sOd, 4)}, s{soff} offen offset:{64 * x}{nt("o_nt")}',
              vmclass='st', **kw)


def region(typ, t, u0, u1):
    best = None
    for seed in range(CFG['tries']):
        seq = region1(typ, t, u0, u1, 2, CFG['anneal'], seed)
        c = model_cycles(seq)[0]
        if best is None or c < best[0]:
            best = (c, seq)
    return best[1]


def region1(typ, t, u0, u1, lag, anneal, seed):
    us = units(typ, t)
    steps = [Step(typ, t, u) for u in us[u0:u1]]
    closes_tile = (steps[-1].u == us[-1])
    bb = []
    info = []
    for st in steps:
        nxt, prv = step_after(typ, t, st.u), step_before(typ, t, st.u)
        g0 = len(bb)
        qk = qk_ops(nxt)
        smf = smf_op(prv)
        bb += qk[:4]
        smf_i = None
        if smf is not None:
            smf_i = len(bb)
            bb.append(smf)
        kb1 = len(bb)
        bb += qk[4:]
        pv0 = len(bb)
        bb += pv_ops(prv)
        info.append(dict(st=st, nxt=nxt, prv=prv, g0=g0, smf=smf_i, kb1=kb1, pv0=pv0, end=len(bb) - 1,
                         smf_b=(vP[1] if prv.u == 6 else vP[0])))
    n = len(bb)
    F = []
    m0_of = {}
    for i, inf in enumerate(info):
        st, g0, end = inf['st'], inf['g0'], inf['end']
        L = end - g0 + 1
        nx = info[i + 1] if i + 1 < len(info) else None
        pv = info[i - 1] if i > 0 else None
        E = []
        for e in range(st.ne):
            tg = g0 + (e * L) // st.ne
            if e == 0:
                mdep = m0_of.get(i)
            else:
                lo = 0
                if pv is not None:
                    lo = (pv['g0'] + 3 + 4) if e < 4 else (pv['pv0'] - 1 + 4)
                mdep = m_op(st, e, lo=lo, tgt=tg - 1)
                F.append(mdep)
            eo = e_op(st, e, tgt=tg, deps=[(mdep, 1)] if mdep is not None else [])
            F.append(eo)
            E.append(eo)
        for k in range(st.ne // 2):
            hi = end
            if nx is not None and k >= 2:
                hi = min(nx['kb1'] - 1, nx['pv0'] - 3)
                if nx['smf'] is not None:
                    hi = min(hi, nx['smf'] - 3)
            lo = max([j for j in range(end + 1) if f'v{st.pb + k}' in bb[j].rd], default=0)
            F.append(c_op(st, k, lo=lo, hi=hi, tgt=E[2 * k + 1].tgt + 1, deps=[(E[2 * k], 1), (E[2 * k + 1], 1)]))
        m0 = m_op(inf['nxt'], 0, lo=g0 + 3 + 4, hi=end, tgt=end - 1)
        F.append(m0)
        m0_of[i + 1] = m0
    last = info[-1]
    allds = []
    odd = t & 1
    bar = None
    cursor = 0
    tail = []
    if u0 == 0 and odd:
        w = vmw('kv', lo=0, hi=0, tgt=0)
        bar = mk('s_barrier', lo=0, hi=1, tgt=0, deps=[(w, 0)])
        F += [w, bar]
        cursor = 2
    bdep = [(bar, 0)] if bar is not None else []
    drain_rd = []
    if t in (2, 3):
        k = t - 2
        for x in range(4):
            op = mk(f'ds_read_b128 {rng("a", aT + 4 * x, 4)}, v{vLIN} offset:{k * 4096 + x * 1024}', lo=0, tgt=x // 2,
                    lds_r=[('stgi', k, False, ('OSTi', -1, k))], wtag={f'a{aT + 4 * x}': ('OTi', -1, k, x)})
            drain_rd.append(op)
        F += drain_rd
        allds += drain_rd
    kv_list = []
    if closes_tile:
        if t == 0:
            kv_list = [2, 3] if typ == 'A' else [3]
        elif t == 15:
            kv_list = [18] if typ == 'A' else []
        else:
            kv_list = [t + 3]
    prev = None
    m0user = None

    def chain(op):
        nonlocal prev
        if prev is not None:
            op.deps.append((prev, 0))
        prev = op
        F.append(op)
        return op

    for tt in kv_list:
        mv = mk(f's_mov_b32 m0, s{sM0[tt & 3]}', tgt=cursor - 1, deps=[(m0user, 0)] if m0user else [])
        F.append(mv)
        for k in range(4):
            m0user = chain(kv_dma(tt, k, tgt=cursor, deps=[(mv, 1)] + bdep))
            cursor += 2
        adv = mk(f's_add_u32 s{sKV}, s{sKV}, 8192', tgt=cursor - 1, deps=[(m0user, 0)])
        F.append(adv)
        prev = adv
    if CFG['pf'] and odd:
        op = chain(mk(f'buffer_load_dword v{vDUM}, v{vPF}, {rng("s", sPFd, 4)}, s{sPF} offen', vmclass='pf', tgt=cursor))
        cursor += 2
        F.append(mk(f's_add_u32 s{sPF}, s{sPF}, 16384', tgt=cursor, deps=[(op, 0)]))
    if drain_rd:
        w = lgkm(drain_rd, tgt=cursor - 1, deps=[(d, 0) for d in drain_rd], name='drain')
        F.append(w)
        for x in range(4):
            op = o_store(aT + 4 * x, x, sO, tgt=cursor, deps=[(w, 0)])
            op.rtag = {f'a{aT + 4 * x}': ('OTi', -1, t - 2, x)}
            chain(op)
            cursor += 2
        F.append(mk(f's_add_u32 s{sO}, s{sO}, 4096', tgt=cursor, deps=[(prev, 0)]))
        if t == 3:
            F.append(mk(f'v_add_u32 v{vLIN}, 0x2000, v{vLIN}', tgt=cursor + 8, deps=[(d, 0) for d in drain_rd]))
    if t in (4, 5):
        k = t - 4
        mv = mk(f's_mov_b32 m0, s{sQM}', tgt=cursor - 1, deps=[(m0user, 0)])
        F.append(mv)
        for x in range(4):
            m0user = chain(q_dma(x, sQ, ('stgi', k, False, ('Qi', 1, k)), 'q', tgt=cursor, deps=[(mv, 1)]))
            cursor += 2
        F.append(mk(f's_add_u32 s{sQ}, s{sQ}, 4096', tgt=cursor, deps=[(m0user, 0)]))
        F.append(mk(f's_add_u32 s{sQM}, s{sQM}, 4096', tgt=cursor + 2, deps=[(mv, 0)]))
    w1needs = []
    if closes_tile:
        if t == 15:
            q0 = []
            for u in range(6):
                lo = 0 if u == 0 else info[u - 1]['pv0'] - 1
                for x in range(4):
                    op = q_read(u, u, x, 1, lo=lo, tgt=lo + x)
                    F.append(op)
                    allds.append(op)
                    if u == 0:
                        q0.append(op)
            w1needs += q0
            w = lgkm(q0, lo=10, tgt=max(cursor - 1, 12), deps=[(d, 0) for d in q0], name='q0')
            F.append(w)
            mv = mk(f's_mov_b32 m0, s{sSTG}', tgt=w.tgt, deps=[(m0user, 0)] if m0user else [])
            F.append(mv)
            cursor = max(cursor, 13)
            for x in range(4):
                m0user = chain(q_dma(x, sQL, ('stg', 0, False, ('Q', 1, 6)), 'qlate', tgt=cursor, deps=[(mv, 1), (w, 0)]))
                cursor += 2
            if typ == 'B':
                smf, pve = -7, 0
                xa = vP[2] + 2
                ad = mk(f'v_lshrrev_b32 v{xa}, 4, v{vPF}', lo=pve, tgt=pve)
                ad2 = mk(f'v_lshl_add_u32 v{xa}, v{xa}, 1, s{sT3}', lo=pve, tgt=pve + 1, deps=[(ad, 0)])
                F += [ad, ad2]
                for blk in range(8):
                    lo = info[0]['end']
                    op = mk(f'ds_write_b128 v{xa}, {rng("a", 112 + 4 * blk, 4)} offset:{blk * 1024}', lo=lo,
                            tgt=lo + 3 * blk, deps=[(ad2, 1)] + bdep, rtag={f'a{112 + 4 * blk}': ('O', 14, 6, blk)},
                            lds_w=[('kv', 2, True, ('X', 0)), ('kv', 3, True, ('X', 0))])
                    F.append(op)
                    allds.append(op)
                la = vP[2] + 3
                a1 = mk(f'v_add_f32 v{vD[3] + 3}, v{vD[3] + 2}, v{vD[3] + 3}', lo=smf + 7, tgt=pve + 6,
                        rtag={f'v{vD[3]}': ('D', 14, 3)})
                a1.rd.append(f'v{vD[3]}')
                a2 = mk(f'v_lshrrev_b32 v{la}, 5, v{vPF}', lo=pve, tgt=pve + 8)
                a3 = mk(f'v_and_b32 v{la}, 60, v{la}', lo=pve, tgt=pve + 9, deps=[(a2, 0)])
                a4 = mk(f'v_add_u32 v{la}, s{sSTG}, v{la}', lo=pve, tgt=pve + 10, deps=[(a3, 0)])
                q5 = [o for o in allds if o.wtag.get(f'a{aQ(5)}') or o.wtag.get(f'a{aQ(5) + 4}') or
                      o.wtag.get(f'a{aQ(5) + 8}') or o.wtag.get(f'a{aQ(5) + 12}')]
                lw = mk(f'ds_write_b32 v{la}, v{vD[3] + 3} offset:{5 * 4096}', tgt=info[4]['pv0'] + 6,
                        deps=[(a1, 1), (a4, 1)] + [(o, 0) for o in q5], lds_w=[('stg', 5, True, ('LX', 0))])
                F += [a1, a2, a3, a4, lw]
                allds.append(lw)
        tn = t + 1
        vlo0 = info[0]['pv0'] if u0 == 0 else 0
        span0 = max(vlo0 + 8, cursor - 4)
        span1 = info[-2]['g0'] - 1
        for i in range(16):
            blk, kb = i >> 1, i & 1
            lo = vlo0 + blk if u0 == 0 else 0
            op = v_read(tn, blk, kb, lo=lo, tgt=span0 + (i * (span1 - span0)) // 16, deps=list(bdep))
            F.append(op)
            allds.append(op)
        kr = []
        for kb in range(2):
            for ds in range(4):
                ka = f'a{aK + 16 * kb + 4 * ds}'
                lo = max(j for j in range(last['g0']) if ka in bb[j].rd)
                op = k_read(tn, kb, ds, lo=lo, tgt=lo + 1, deps=list(bdep))
                F.append(op)
                allds.append(op)
                kr.append(op)
        w1needs += kr[:4]
        w1 = lgkm(w1needs, lo=last['g0'] - 2, hi=last['g0'] - 1, tgt=last['g0'] - 1, deps=[(d, 0) for d in w1needs], name='w1')
        w2 = lgkm(allds, lo=last['kb1'] - 2, hi=last['kb1'] - 1, tgt=last['kb1'] - 1, deps=[(d, 0) for d in allds] + [(w1, 0)],
                  name='w2')
        F += [w1, w2]
    for f in F:
        if f.kind == 'vmem':
            f.soft = 0.1 if f.vmclass in ('kv', 'qlate') else 0.03
        elif f.kind == 'wait':
            f.soft = 0.03
        elif f.kind == 'ds':
            f.soft = 0.003
        else:
            f.soft = 0.01
    if t == 5:
        F.append(mk(f's_sub_u32 s{sLOOP}, s{sLOOP}, 1', tgt=n - 12, hi=n - 2))
        tail = [mk(f's_cmp_lg_u32 s{sLOOP}, 0'), mk(f's_cbranch_scc1 L_{typ}_loop')]
        for f in F:
            f.hi = min(f.hi, n - 2)
    if t == 15 and typ == 'B':
        tail = [mk('s_branch L_A_S0')]
        for f in F:
            f.hi = min(f.hi, n - 2)
    return schedule(bb, F, lag=lag, reserve_last=tail, anneal=anneal, seed=seed)


def lpair(u):
    return vD[3] + 2 if u == 6 else vD[u >> 1] + 2 * (u & 1)


def check_l(E, reg, first):
    if first:
        E(f'v_subrev_u32 v{vCHK}, s{sLO}, v{reg}')
    else:
        E(f'v_subrev_u32 v{vT}, s{sLO}, v{reg}')
        E(f'v_max_u32 v{vCHK}, v{vCHK}, v{vT}')


def pack_unit(out, u, slot, src=None, tlast=-1):
    E = lambda s, **kw: out.append(mk(s, **kw))
    kind, base = Oreg(u)
    if kind == 'a':
        for i in range(32):
            E(f'v_accvgpr_read_b32 v{src + i}, a{base + i}',
              rtag={f'a{base + i}': ('O', tlast, u, i >> 2)} if i % 4 == 0 else None)
        base = src
    r = lpair(u)
    for m in range(4):
        b = base + 8 * m
        for i in range(4):
            tg = {f'v{b + 2 * i}': ('O', tlast, u, 2 * m + (i >> 1))} if (kind == 'v' and i % 2 == 0) else None
            E(f'v_pk_mul_f32 {rng("v", b + 2 * i, 2)}, {rng("v", b + 2 * i, 2)}, {rng("v", r, 2)} op_sel_hi:[1,0]', rtag=tg)
        for i in range(4):
            E(f'v_cvt_pk_bf16_f32 v{b + i}, v{b + 2 * i}, v{b + 2 * i + 1}')
    for m in range(4):
        E(f'ds_write_b128 v{vQR}, {rng("v", base + 8 * m, 4)} offset:{slot * 4096 + m * 1024}',
          lds_w=[('stg', slot, False, ('OST', -1, slot))])


def late_q(out):
    out.append(vmw('qlate'))
    for x in range(4):
        out.append(q_read(6, 0, x, 0))


def epilogue(typ):
    out = []
    E = lambda s, **kw: out.append(mk(s, **kw))
    nu = 7 if typ == 'A' else 6
    E(f'v_add_u32 v{vLIN}, {(-24576) & 0xffffffff:#x}, v{vLIN}')
    for u in range(nu):
        r = lpair(u)
        op = mk(f'v_add_f32 v{r + 1}, v{r}, v{r + 1}', rtag={f'v{vD[u >> 1]}': ('D', -1, u >> 1)} if (u & 1) == 0 else None)
        out.append(op)
        check_l(E, r + 1, u == 0)
        E(f'v_rcp_f32 v{r}, v{r + 1}')
    if typ == 'A':
        E(f's_add_u32 s{sO}, s{sCUR["A"]}, 4096')
        pack_unit(out, 0, 5)
        rd = [mk(f'ds_read_b128 {rng("a", aT + 4 * x, 4)}, v{vLIN} offset:{5 * 4096 + x * 1024}',
                 lds_r=[('stg', 5, False, ('OST', -1, 5))]) for x in range(4)]
        out += rd
        pack_unit(out, 2, 1)
        E('s_waitcnt lgkmcnt(4)')
        for x in range(4):
            out.append(o_store(aT + 4 * x, x, sCUR['A']))
        pack_unit(out, 3, 2)
        pack_unit(out, 4, 3)
        pack_unit(out, 5, 4)
        late_q(out)
        pack_unit(out, 1, 0)
        pack_unit(out, 6, 5, src=Oreg(0)[1])
        for k in (2, 3):
            E(f'v_mov_b32 v{vP[2] + k}, 0', wtag={f'v{vP[2] + k}': ('L', 0, 'zero')})
    else:
        E(f's_mov_b32 s{sO}, s{sCUR["B"]}')
        xb = Oreg(1)[1]
        E(f'v_lshrrev_b32 v{vT}, 3, v{vPF}')
        E(f's_lshl_b32 s{sT0}, s{sW}, 11')
        E(f's_add_u32 s{sT0}, s{sT0}, 32768')
        E(f'v_add_u32 v{vP[2] + 2}, s{sT0}, v{vT}')
        E(f'v_lshrrev_b32 v{vT}, 5, v{vPF}')
        E(f'v_and_b32 v{vT}, 60, v{vT}')
        E(f'v_add_u32 v{vP[2] + 3}, {STG + 5 * 4096:#x}, v{vT}')
        E(f'v_add_u32 v{vP[2]}, {STG + 5 * 4096 + 3 * 24576:#x}, v{vT}')
        E('s_waitcnt lgkmcnt(0)')
        E('s_barrier')
        pack_unit(out, 1, 1)
        for w in range(4):
            for b in range(2):
                E(f'ds_read_b128 {rng("v", xb + 8 * w + 4 * b, 4)}, v{vP[2] + 2} offset:{w * 8192 + b * 1024}',
                  lds_r=[('kv', 2, True, ('X', -1)), ('kv', 3, True, ('X', -1))])
        for w in range(4):
            a = f'v{vP[2] + 3} offset:{w * 24576}' if w < 3 else f'v{vP[2]}'
            E(f'ds_read_b32 v{vD[3] + w}, {a}', lds_r=[('stg', 5, True, ('LX', -1))])
        pack_unit(out, 2, 2)
        E('s_waitcnt lgkmcnt(4)')
        d = vD[3]
        E(f'v_add_f32 v{d}, v{d}, v{d + 1}')
        E(f'v_add_f32 v{d + 3}, v{d + 2}, v{d + 3}')
        for w in (1, 3):
            for i in range(4):
                a = xb + 8 * (w - 1) + 2 * i
                E(f'v_pk_add_f32 {rng("v", a, 2)}, {rng("v", a, 2)}, {rng("v", a + 8, 2)}')
        E(f'v_add_f32 v{d + 3}, v{d}, v{d + 3}')
        check_l(E, d + 3, False)
        E(f'v_rcp_f32 v{d + 2}, v{d + 3}')
        for i in range(4):
            a = xb + 2 * i
            E(f'v_pk_add_f32 {rng("v", a, 2)}, {rng("v", a, 2)}, {rng("v", a + 16, 2)}')
        for i in range(4):
            a = xb + 2 * i
            E(f'v_pk_mul_f32 {rng("v", a, 2)}, {rng("v", a, 2)}, {rng("v", d + 2, 2)} op_sel_hi:[1,0]')
        for i in range(4):
            E(f'v_cvt_pk_bf16_f32 v{xb + i}, v{xb + 2 * i}, v{xb + 2 * i + 1}')
        E(f'v_lshlrev_b32 v{xb + 8}, 1, v{vPF}')
        E(f'v_and_b32 v{xb + 8}, 0xf00, v{xb + 8}')
        E(f'v_lshrrev_b32 v{xb + 9}, 11, v{vPF}')
        E(f'v_lshl_add_u32 v{xb + 8}, v{xb + 9}, 4, v{xb + 8}')
        E(f's_lshl_b32 s{sT0}, s{sW}, 6')
        E(f's_add_u32 s{sT0}, s{sT0}, s{sLATE["B"]}')
        E(f'buffer_store_dwordx4 {rng("v", xb, 4)}, v{xb + 8}, {rng("s", sOd, 4)}, s{sT0} offen{nt("o_nt")}', vmclass='st')
        pack_unit(out, 3, 3)
        pack_unit(out, 4, 4)
        late_q(out)
        pack_unit(out, 0, 0)
        E('s_barrier')
        pack_unit(out, 5, 5)
    E(f'v_cmp_lt_u32 vcc, s{sRANGE}, v{vCHK}')
    for p in range(4):
        for i in range(4):
            E(f'v_mov_b32 v{vD[p] + i}, 0', wtag={f'v{vD[p]}': ('L', 0, 'dz')} if i == 0 else None)
    E(f's_lshl_b32 s{sT0}, 1, s{sPASS}')
    E('s_cmp_lg_u64 vcc, 0')
    E(f's_cselect_b32 s{sT0}, s{sT0}, 0')
    E(f's_or_b32 s{sFAIL}, s{sFAIL}, s{sT0}')
    E(f's_add_u32 s{sCUR[typ]}, s{sCUR[typ]}, {2 * QH}')
    E(f's_add_u32 s{sLATE[typ]}, s{sLATE[typ]}, {2 * QH}')
    E(f's_add_u32 s{sPASS}, s{sPASS}, 1')
    E(f's_mov_b32 s{sQM}, s{sSTG}')
    E(f's_mov_b32 s{sLOOP}, 3')
    E(f's_cmp_lt_u32 s{sPASS}, 3')
    E(f's_cselect_b32 s{sQ}, s{sCUR[typ]}, {OOB:#x}')
    E(f's_cselect_b32 s{sQL}, s{sLATE[typ]}, {OOB:#x}')
    E('s_waitcnt lgkmcnt(8)')
    E(f's_cmp_eq_u32 s{sPASS}, 4')
    E('s_cbranch_scc1 L_final')
    return out


def final_drain():
    out = []
    E = lambda s, **kw: out.append(mk(s, **kw))
    E('L_final:')
    for k in range(6):
        for x in range(4):
            E(f'ds_read_b128 {rng("a", 16 * k + 4 * x, 4)}, v{vLIN} offset:{k * 4096 + x * 1024}',
              lds_r=[('stg', k, False, ('OST', -1, k))])
        if k >= 2:
            E('s_waitcnt lgkmcnt(8)')
            for x in range(4):
                out.append(o_store(16 * (k - 2) + 4 * x, x, sO))
            E(f's_add_u32 s{sO}, s{sO}, 4096')
    for k in (4, 5):
        E(f's_waitcnt lgkmcnt({4 * (5 - k)})')
        for x in range(4):
            out.append(o_store(16 * k + 4 * x, x, sO))
        E(f's_add_u32 s{sO}, s{sO}, 4096')
    return out


def f32bits(x):
    return struct.unpack('<I', struct.pack('<f', x))[0]


def srd(E, s, ptr, bias, nrec):
    if bias:
        E(f's_sub_u32 s{s}, s{ptr}, {-bias}')
        E(f's_subb_u32 s{s + 1}, s{ptr + 1}, 0')
    else:
        E(f's_mov_b32 s{s}, s{ptr}')
        E(f's_mov_b32 s{s + 1}, s{ptr + 1}')
    if isinstance(nrec, str):
        E(f's_add_u32 s{s + 2}, {nrec}, {-bias}')
    else:
        E(f's_mov_b32 s{s + 2}, {nrec - bias}')
    E(f's_mov_b32 s{s + 3}, 0x20000')


def prologue(first):
    out = []
    E = lambda s, **kw: out.append(mk(s, **kw))
    pq, pk, pv, po = 80, 82, 84, 86
    E('s_cmp_ge_u32 s2, 256')
    E('s_cbranch_scc1 L_end')
    E(f's_load_dwordx4 s[{pq}:{pq + 3}], s[0:1], 0')
    E(f's_load_dwordx4 s[{pv}:{pv + 3}], s[0:1], 16')
    E('v_lshrrev_b32 v1, 6, v0')
    E('v_and_b32 v0, 63, v0')
    E(f'v_readfirstlane_b32 s{sW}, v1')
    E(f's_and_b32 s{sT0}, s2, 7')
    E(f's_lshr_b32 s{sT1}, s2, 3')
    E(f's_and_b32 s{sROLE}, s{sT1}, 1')
    E(f's_lshr_b32 s{sT1}, s{sT1}, 1')
    E(f's_lshl_b32 s{sT0}, s{sT0}, 6')
    E(f's_lshl_b32 s{sT1}, s{sT1}, 2')
    E(f's_add_u32 s{sH0}, s{sT0}, s{sT1}')
    E('v_lshrrev_b32 v2, 4, v0')
    E('v_lshlrev_b32 v3, 1, v2')
    E('v_mov_b32 v4, 0x78')
    E('v_bfe_u32 v5, v4, v3, 2')
    E('v_and_b32 v6, 3, v0')
    E('v_xor_b32 v6, v6, v5')
    E('v_lshrrev_b32 v7, 2, v0')
    E('v_lshlrev_b32 v8, 8, v7')
    E(f'v_lshl_add_u32 v{vDMA}, v6, 4, v8')
    E('v_lshl_add_u32 v9, v7, 2, v6')
    E('v_lshlrev_b32 v9, 4, v9')
    E('v_and_b32 v10, 15, v0')
    E('v_lshrrev_b32 v11, 2, v10')
    E('v_lshlrev_b32 v11, 1, v11')
    E('v_bfe_u32 v11, v4, v11, 2')
    E('v_xor_b32 v11, v11, v2')
    E('v_lshl_add_u32 v11, v10, 2, v11')
    E('v_lshlrev_b32 v11, 4, v11')
    E(f'v_lshlrev_b32 v{vPF}, 7, v0')
    E(f's_and_b32 s{sT0}, s{sW}, 1')
    E(f's_lshr_b32 s{sT1}, s{sW}, 1')
    for j in range(2):
        for kb in range(2):
            E(f's_xor_b32 s{sT2}, s{sT0}, {j}')
            E(f's_xor_b32 s{sT3}, s{sT1}, {kb}')
            E(f's_lshl_b32 s{sT2}, s{sT2}, 14')
            E(f's_lshl_b32 s{sT3}, s{sT3}, 13')
            E(f's_add_u32 s{sT2}, s{sT2}, s{sT3}')
            E(f'v_add_u32 v{vK[j][kb]}, s{sT2}, v11')
            E(f'v_add_u32 v{vV[j][kb]}, s{sT2}, v9')
    E(f's_mul_i32 s{sSTG}, s{sW}, 24576')
    E(f's_add_u32 s{sSTG}, s{sSTG}, {STG}')
    E(f'v_add_u32 v{vQR}, s{sSTG}, v11')
    E(f'v_lshl_add_u32 v{vLIN}, v0, 4, s{sSTG}')
    E(f's_lshl_b32 s{sM0[0]}, s{sW}, 12')
    for k in range(1, 4):
        E(f's_add_u32 s{sM0[k]}, s{sM0[0]}, {k * SLOT}')
    E(f's_lshl_b32 s{sKV}, s{sH0}, 17')
    E(f's_add_u32 s{sT2}, s{sKV}, {4 * KH}')
    E(f's_lshl_b32 s{sPF}, s{sT1}, 13')
    E(f's_add_u32 s{sPF}, s{sPF}, s{sKV}')
    E(f's_lshl_b32 s{sT1}, s{sT1}, 12')
    E(f's_lshl_b32 s{sT3}, s{sT0}, 7')
    E(f's_add_u32 s{sKV}, s{sKV}, s{sT1}')
    E(f's_add_u32 s{sKV}, s{sKV}, s{sT3}')
    E(f's_add_u32 s{sT1}, s{sH0}, s{sROLE}')
    E(f's_mul_i32 s{sT1}, s{sT1}, {QH}')
    E(f's_mul_i32 s{sT3}, s{sW}, {112 * 256}')
    E(f's_add_u32 s{sCUR["A"]}, s{sT1}, s{sT3}')
    E(f's_add_u32 s{sLATE["A"]}, s{sCUR["A"]}, {96 * 256}')
    E(f's_xor_b32 s{sT1}, s{sROLE}, 1')
    E(f's_add_u32 s{sT1}, s{sH0}, s{sT1}')
    E(f's_mul_i32 s{sT1}, s{sT1}, {QH}')
    E(f's_add_u32 s{sLATE["B"]}, s{sT1}, {832 * 256}')
    E(f's_mul_i32 s{sT3}, s{sW}, {96 * 256}')
    E(f's_add_u32 s{sT1}, s{sT1}, s{sT3}')
    E(f's_add_u32 s{sCUR["B"]}, s{sT1}, {448 * 256}')
    E('s_waitcnt lgkmcnt(0)')
    srd(E, sK[0], pk, 0, f's{sT2}')
    srd(E, sK[1], pk, -960, f's{sT2}')
    srd(E, sV[0], pv, -2048, f's{sT2}')
    srd(E, sV[1], pv, -3008, f's{sT2}')
    for x in range(4):
        srd(E, sQd[x], pq, -960 * x, QBYTES)
    srd(E, sOd, po, 0, QBYTES)
    E(f's_cmp_eq_u32 s{sT0}, 0')
    E(f's_cselect_b64 s[{sPFd}:{sPFd + 1}], s[{pk}:{pk + 1}], s[{pv}:{pv + 1}]')
    E(f's_mov_b32 s{sPFd + 2}, s{sT2}')
    E(f's_mov_b32 s{sPFd + 3}, 0x20000')
    E(f's_cmp_eq_u32 s{sROLE}, 0')
    E(f's_cselect_b32 s{sQ}, s{sCUR["A"]}, s{sCUR["B"]}')
    E(f's_cselect_b32 s{sQL}, s{sLATE["A"]}, s{sLATE["B"]}')
    for t in (0, 1):
        E(f's_mov_b32 m0, s{sM0[t]}')
        E('s_nop 0')
        for k in range(4):
            out.append(kv_dma(t, k))
        E(f's_add_u32 s{sKV}, s{sKV}, 8192')
    E(f's_mov_b32 s{sQM}, s{sSTG}')
    for u in range(6):
        E(f's_mov_b32 m0, s{sQM}')
        E(f's_add_u32 s{sQM}, s{sQM}, 4096')
        for x in range(4):
            out.append(q_dma(x, sQ, ('stg', u, False, ('Q', 0, u)), f'q{u}'))
        E(f's_add_u32 s{sQ}, s{sQ}, 4096')
    if CFG['pf']:
        for k in range(1, (CFG['pf_ahead'] + 1) // 2):
            E(f's_add_u32 s{sPF}, s{sPF}, 16384')
            E(f'buffer_load_dword v{vDUM}, v{vPF}, {rng("s", sPFd, 4)}, s{sPF} offen', vmclass='pf')
        E(f's_add_u32 s{sPF}, s{sPF}, 16384')
    E(f's_mov_b32 s{sC}, {f32bits(1.4426950408889634 * 128 ** -0.5):#x}')
    E(f's_mov_b32 s{sLO}, {f32bits(2.0 ** -16):#x}')
    E(f's_mov_b32 s{sRANGE}, {f32bits(2.0 ** 32) - f32bits(2.0 ** -16):#x}')
    E(f's_mov_b32 s{sFAIL}, 0')
    E(f's_mov_b32 s{sPASS}, 0')
    E(f's_mov_b32 s{sLOOP}, 3')
    E(f's_mov_b32 s{sO}, {OOB:#x}')
    E(f's_mov_b32 s{sQM}, s{sSTG}')
    E(f's_lshl_b32 s{sT3}, s{sW}, 13')
    E(f's_add_u32 s{sT3}, s{sT3}, 32768')
    E('v_lshrrev_b32 v12, 5, v0')
    E('v_bfe_u32 v13, v0, 1, 1')
    E('v_xor_b32 v12, v12, v13')
    E('v_add_u32 v12, -1, v12')
    for i in range(4):
        E(f'v_and_b32 v{vSA + i}, 0x3f803f80, v12')
    E('v_and_b32 v13, 1, v0')
    E('v_mul_u32_u24 v13, 0xaaaa, v13')
    E(f'v_add_u32 v{vIDX}, 0x4444, v13')
    for p in range(4):
        for i in range(4):
            E(f'v_mov_b32 v{vD[p] + i}, 0', wtag={f'v{vD[p]}': ('L', 0, 'dz')} if i == 0 else None)
    for k in range(4):
        E(f'v_mov_b32 v{vP[2] + k}, 0', wtag={f'v{vP[2] + k}': ('L', 0, 'zero')})
        E(f'v_mov_b32 v{vP[1] + k}, 0')
    out.append(vmw('kv'))
    E('s_barrier')
    for kb in range(2):
        for ds in range(4):
            out.append(k_read(0, kb, ds))
    out.append(vmw('q0'))
    for x in range(4):
        out.append(q_read(0, 0, x, 0))
    E(f's_mov_b32 m0, s{sSTG}')
    E('s_waitcnt lgkmcnt(0)')
    for x in range(4):
        out.append(q_dma(x, sQL, ('stg', 0, False, ('Q', 0, 6)), 'qlate'))
    s0, s1 = Step(first, 0, 0), Step(first, 0, 1)
    out += qk_ops(s0)
    for i in range(16):
        out.append(v_read(0, i >> 1, i & 1))
    out.append(vmw('q1'))
    for x in range(4):
        out.append(q_read(1, 1, x, 0))
    for e in range(8):
        out.append(m_op(s0, e))
    for e in range(8):
        out.append(e_op(s0, e))
    E('s_waitcnt lgkmcnt(0)')
    out += qk_ops(s1)
    for k in range(4):
        out.append(c_op(s0, k))
    for u in range(2, 6):
        out.append(vmw(f'q{u}'))
        for x in range(4):
            out.append(q_read(u, u, x, 0))
    late_q(out)
    out.append(m_op(s1, 0))
    E('s_waitcnt lgkmcnt(0)')
    E(f's_cmp_eq_u32 s{sROLE}, 0')
    E(f's_cselect_b32 s{sQ}, s{sCUR["B"]}, s{sCUR["A"]}')
    E(f's_cselect_b32 s{sQL}, s{sLATE["B"]}, s{sLATE["A"]}')
    E('s_cbranch_scc1 L_A_rest')
    extra = [mk(f's_mov_b32 m0, s{sM0[2]}'), mk('s_nop 0')] + [kv_dma(2, k) for k in range(4)] + \
            [mk(f's_add_u32 s{sKV}, s{sKV}, 8192'), mk('s_branch L_B_rest')]
    return out, extra


def build(verbose=True):
    R = {}
    for typ in 'AB':
        R[typ, 'S0'] = region(typ, 0, 0, 1)
        R[typ, 'rest'] = region(typ, 0, 1, 7)
        for t in (1, 2, 3, 4, 5, 14, 15):
            R[typ, t] = region(typ, t, 0, 7)
        R[typ, 'epi'] = epilogue(typ)
    fin = final_drain()
    pro, extra = prologue('A')
    traces = []
    for first in 'AB':
        tr = [(o, (0, 0)) for o in pro]
        if first == 'B':
            tr += [(o, (0, 0)) for o in extra]
        typ = first
        for p in range(4):
            tr += [(o, (p, 0)) for o in R[typ, 'rest']]
            tr += [(o, (p, 0)) for o in R[typ, 1]]
            for it in range(3):
                for t in (2, 3, 4, 5):
                    tr += [(o, (p, it)) for o in R[typ, t]]
            for t in (14, 15):
                tr += [(o, (p, 0)) for o in R[typ, t]]
            tr += [(o, (p + 1, 0)) for o in R[other(typ), 'S0']]
            tr += [(o, (p + 1, 0)) for o in R[typ, 'epi']]
            typ = other(typ)
        tr += [(o, (4, 0)) for o in fin]
        traces.append(tr)
    resolve_vm_waits(traces)
    nerr = 0
    for first, tr in zip('AB', traces):
        errs = check_trace(tr, first + '-first')
        nerr += len(errs)
    if verbose:
        tot = 0
        for typ in 'AB':
            c = {k: model_cycles(R[typ, k]) for k in ('S0', 'rest', 1, 2, 3, 4, 5, 14, 15, 'epi')}
            s = c['S0'][0] + c['rest'][0] + 3 * sum(c[t][0] for t in (2, 3, 4, 5)) + sum(c[t][0] for t in (1, 14, 15)) + c['epi'][0]
            tot += 2 * s
            print(typ, {k: v for k, v in c.items()}, 'pass', s, file=sys.stderr)
        print('model total', tot, file=sys.stderr)
    code = []
    emit = lambda ops: code.extend(o.render() for o in ops)
    emit(pro)
    emit(extra)
    for typ in 'AB':
        code.append(f'L_{typ}_S0:')
        emit(R[typ, 'S0'])
        emit(R[other(typ), 'epi'])
        code.append(f'L_{typ}_rest:')
        emit(R[typ, 'rest'])
        for t in (1, 2, 3, 4, 5, 14, 15):
            code.append(f'; ---- type {typ} tile {t}')
            if t == 2:
                code.append(f'L_{typ}_loop:')
            emit(R[typ, t])
    emit(fin)
    if CFG['slow']:
        from slow import slow_path
        code += slow_path(sys.modules[__name__])
    code.append('L_end:')
    return code, nerr


HEADER = '''; Attention forward, softmax(Q K^T / sqrt(128)) V, for 512 heads of 848 x 512 x 128 bf16 (generated by my own script).
; a wave that finds a row sum outside that range (or not finite) recomputes its rows of that pass with the true
; @launch grid=(256,1,1) block=(256,1,1) lds=163840
.amdgcn_target "amdgcn-amd-amdhsa--gfx950"
.text
.globl {name}
.p2align 8
.type {name},@function
{name}:
'''
FOOTER = '''s_endpgm
.section .rodata,"a"
.p2align 6
.amdhsa_kernel {name}
  .amdhsa_next_free_vgpr 512
  .amdhsa_next_free_sgpr 102
  .amdhsa_accum_offset 256
  .amdhsa_group_segment_fixed_size 0
  .amdhsa_kernarg_size 48
  .amdhsa_user_sgpr_count 2
  .amdhsa_user_sgpr_kernarg_segment_ptr 1
  .amdhsa_system_sgpr_workgroup_id_x 1
.end_amdhsa_kernel
'''


def generate(path, **cfg):
    CFG.update(cfg)
    code, nerr = build()
    text = HEADER.format(name=NAME) + '\n'.join(c if c.endswith(':') or c.startswith(';') else '    ' + c for c in code) + '\n' + \
        FOOTER.format(name=NAME)
    with open(path, 'w') as f:
        f.write(text)
    return nerr


if __name__ == '__main__':
    path = sys.argv[1] if len(sys.argv) > 1 else 'standalone__mha_softmax__near_ridge.s'
    cfg = {}
    for a in sys.argv[2:]:
        k, v = a.split('=')
        cfg[k] = int(v)
    n = generate(path, **cfg)
    print('errors:', n)


def show(seq):
    line = ''
    ab = {'v_exp': 'E', 'v_mul': 'M', 'v_cvt': 'C', 'ds_read_b128': 'L', 'ds_read_b64': 't', 'ds_write': 'W', 'buffer_load': 'D',
          'buffer_store': 'S', 's_waitcnt': 'w', 's_barrier': 'B', 'v_smf': '#', 'v_mfma': '|'}
    for o in seq:
        t = o.render()
        for k, v in ab.items():
            if t.startswith(k):
                line += v
                break
        else:
            line += 's' if t.startswith('s_') else 'v'
    return line
```

```python
import math
import random
import re

COST = {'dsw': 20, 'mfma': 8, 'valu': 4, 'trans': 8, 'ds': 4, 'vmem': 8, 'salu': 4, 'wait': 4, 'bar': 4, 'branch': 4,
        'label': 0, 'nop': 4}


def regs(kind, base, n=1):
    return [f'{kind}{base + i}' for i in range(n)]


def rng(kind, base, n):
    return f'{kind}{base}' if n == 1 else f'{kind}[{base}:{base + n - 1}]'


class Op:
    def __init__(self, text, kind, rd=(), wr=(), lo=0, hi=10 ** 9, tgt=None, deps=(), rtag=None, wtag=None,
                 needs=None, vmclass=None, lds_r=None, lds_w=None, name='', soft=0.0):
        self.text, self.kind = text, kind
        self.rd, self.wr = list(rd), list(wr)
        self.lo, self.hi = lo, hi
        self.tgt = tgt if tgt is not None else lo
        self.deps = list(deps)
        self.rtag, self.wtag = rtag or {}, wtag or {}
        self.needs = needs
        self.vmclass = vmclass
        self.lds_r, self.lds_w = lds_r, lds_w
        self.name = name
        self.soft = soft
        self.gap = None
        self.n = None

    @property
    def cost(self):
        return COST['dsw'] if self.text.startswith('ds_write_b128') else COST[self.kind]

    def render(self):
        if self.kind == 'wait' and self.needs is not None:
            return f's_waitcnt lgkmcnt({self.n})'
        if self.kind == 'wait' and self.vmclass is not None:
            return f's_waitcnt vmcnt({self.n})'
        return self.text


VSP = 5
LAT = 7
ORDER = {'wait': 1, 'bar': 1, 'ds': 0, 'vmem': 0, 'salu': 2, 'valu': 3, 'trans': 3, 'branch': 9, 'nop': 3}


def schedule(backbone, fillers, lag=2, reserve_last=(), anneal=0, seed=1):
    n = len(backbone)
    for f in fillers:
        f.gap = None
        if f.hi >= n:
            f.hi = n - 1
    changed = True
    while changed:
        changed = False
        for f in fillers:
            for d, dist in f.deps:
                lim = f.hi - (1 if dist > 0 or d.kind == 'trans' else 0)
                if f.kind == 'wait' and d.kind == 'ds':
                    lim = f.hi - LAT
                if f.kind == 'vmem' and d.kind == 'vmem':
                    lim = f.hi - VSP
                if dist > 2:
                    lim = f.hi - (dist + 1) // 2
                if d.hi > lim:
                    d.hi = lim
                    changed = True
    for f in fillers:
        if f.tgt > f.hi:
            f.tgt = f.hi
        assert f.lo <= f.hi, (f.text, f.name, f.lo, f.hi)
    pend = list(fillers)
    out = []
    pos = {}
    gaps = []
    for g in range(n):
        out.append(backbone[g])
        cur = []
        cost = 0
        last = (g == n - 1)

        def ready(f):
            if f.lo > g:
                return False
            for d, dist in f.deps:
                if d.gap is None:
                    return False
                if f.kind == 'wait' and d.kind == 'ds' and g - d.gap < LAT:
                    return False
                if f.kind == 'vmem' and d.kind == 'vmem' and g - d.gap < VSP:
                    return False
                if d.gap == g:
                    if dist > 0 or d.kind == 'trans':
                        return False
                    if ORDER[d.kind] > ORDER[f.kind] and not (d.kind in ('wait', 'bar')):
                        return False
                elif len(out) - pos[d] - 1 + 0 < dist:
                    return False
            if f.kind == 'vmem' and any(c.kind in ('vmem', 'ds') for c in cur):
                return False
            if f.kind == 'ds' and any(c.kind == 'vmem' for c in cur):
                return False
            return True

        while True:
            cand = [f for f in pend if ready(f)]
            if not cand:
                break
            must = [f for f in cand if f.hi <= g]
            pick = None
            if must:
                pick = min(must, key=lambda f: (f.hi, f.tgt))
            elif last and reserve_last:
                break
            else:
                late = [f for f in cand if f.tgt < g - lag]
                if cost >= 8:
                    if not late:
                        break
                    pick = min(late, key=lambda f: f.tgt)
                else:
                    fit = [f for f in cand if cost + f.cost <= 8]
                    fit = [f for f in fit if f.kind not in ('wait', 'bar') or f.tgt <= g]
                    if cost == 0:
                        best = min(fit, key=lambda f: f.tgt) if fit else None
                        if best is not None and best.cost == 4:
                            partners = [f for f in fit if f is not best and f.cost == 4]
                            eight = [f for f in fit if f.cost == 8]
                            if not partners and eight:
                                best = min(eight, key=lambda f: f.tgt)
                        pick = best
                    else:
                        pick = min(fit, key=lambda f: f.tgt) if fit else None
                        if pick is None:
                            rest = [f for f in cand if f.kind not in ('wait', 'bar') and f.tgt <= g]
                            pick = min(rest, key=lambda f: f.tgt) if rest else None
                    if pick is None:
                        break
            pick.gap = g
            cur.append(pick)
            cost += pick.cost
            pend.remove(pick)
        cur.sort(key=lambda f: ORDER[f.kind])
        ordered = []
        todo = list(cur)
        while todo:
            for f in todo:
                if all(d not in todo for d, _ in f.deps):
                    ordered.append(f)
                    todo.remove(f)
                    break
            else:
                raise RuntimeError('cyclic deps in gap')
        if last:
            ordered += list(reserve_last)
        for f in ordered:
            pos[f] = len(out)
            out.append(f)
        gaps.append(ordered)
    assert not pend, [(f.text, f.name, f.lo, f.hi) for f in pend]
    if anneal:
        improve(n, fillers, anneal, sum(o.cost for o in reserve_last), seed)
    return emit(backbone, fillers, reserve_last)


def same_gap_ok(d, dist, f):
    if dist > 0 or d.kind == 'trans':
        return False
    return ORDER[d.kind] <= ORDER[f.kind] or d.kind in ('wait', 'bar')


def improve(n, fillers, iters, lastcost, seed):
    rnd = random.Random(seed)
    users = {id(f): [] for f in fillers}
    for f in fillers:
        for d, dist in f.deps:
            users[id(d)].append((f, dist))
    def mind(d, dist, f):
        if f.kind == 'wait' and d.kind == 'ds':
            return LAT
        if f.kind == 'vmem' and d.kind == 'vmem':
            return VSP
        return 0 if same_gap_ok(d, dist, f) else 1
    pre = {id(f): [(d, mind(d, dist, f)) for d, dist in f.deps] for f in fillers}
    post = {id(f): [(u, mind(f, dist, u)) for u, dist in users[id(f)]] for f in fillers}
    inq = [[] for _ in range(n)]
    for f in fillers:
        inq[f.gap].append(f)
    load = [0] * n
    nv = [0] * n
    nd = [0] * n
    load[n - 1] += lastcost
    for f in fillers:
        load[f.gap] += f.cost
        nv[f.gap] += f.kind == 'vmem'
        nd[f.gap] += f.kind == 'ds'
    vm = [f for f in fillers if f.kind == 'vmem']

    def iso():
        gs = sorted(f.gap for f in vm)
        return 0

    def window(f):
        lo, hi = f.lo, f.hi
        for d, k in pre[id(f)]:
            if d.gap + k > lo:
                lo = d.gap + k
        for u, k in post[id(f)]:
            if u.gap - k < hi:
                hi = u.gap - k
        return lo, hi

    def fits(f, g):
        if f.kind == 'vmem':
            return nv[g] == 0 and nd[g] == 0
        if f.kind == 'ds':
            return nv[g] == 0
        return True

    def move(f, g):
        o = f.gap
        inq[o].remove(f)
        inq[g].append(f)
        load[o] -= f.cost
        load[g] += f.cost
        if f.kind == 'vmem':
            nv[o] -= 1
            nv[g] += 1
        elif f.kind == 'ds':
            nd[o] -= 1
            nd[g] += 1
        f.gap = g

    def gc(g):
        x = load[g]
        return max(8, x) + (0.05 * (x - 12) if x > 12 else 0)

    def soft(f, g):
        return f.soft * abs(g - f.tgt)

    cur_iso = iso()
    total = sum(gc(g) for g in range(n)) + cur_iso + sum(soft(f, f.gap) for f in fillers)
    best, best_gaps = total, [f.gap for f in fillers]
    for it in range(iters):
        T = 1.0 * (1 - it / iters) ** 3 + 0.004
        f = fillers[rnd.randrange(len(fillers))]
        lo, hi = window(f)
        if lo >= hi:
            continue
        o = f.gap
        g = rnd.randint(max(lo, o - 6), min(hi, o + 6))
        if g == o:
            continue
        other = None
        if rnd.random() < 0.6:
            c = inq[g]
            if c:
                other = c[rnd.randrange(len(c))]
        before = gc(o) + gc(g) + soft(f, o) + (soft(other, g) if other else 0)
        if other is None:
            if not fits(f, g):
                continue
            move(f, g)
        else:
            if any(d is other for d, _ in f.deps) or any(d is f for d, _ in other.deps):
                continue
            l2, h2 = window(other)
            if not l2 <= o <= h2:
                continue
            move(f, g)
            move(other, o)
            if nv[g] > 1 or nv[o] > 1 or (nv[g] and nd[g]) or (nv[o] and nd[o]):
                move(f, o)
                move(other, g)
                continue
        new_iso = iso() if (f.kind == 'vmem' or (other and other.kind == 'vmem')) else cur_iso
        delta = gc(o) + gc(g) + soft(f, g) + (soft(other, o) if other else 0) - before + new_iso - cur_iso
        if delta <= 0 or rnd.random() < math.exp(-delta / T):
            total += delta
            cur_iso = new_iso
            if total < best - 1e-9:
                best, best_gaps = total, [x.gap for x in fillers]
        else:
            move(f, o)
            if other:
                move(other, g)
    for f, g in zip(fillers, best_gaps):
        f.gap = g


def emit(backbone, fillers, reserve_last):
    n = len(backbone)
    out = []
    pos = {}
    for g in range(n):
        out.append(backbone[g])
        todo = sorted([f for f in fillers if f.gap == g], key=lambda f: (ORDER[f.kind], f.tgt))
        ordered = []
        while todo:
            for f in todo:
                if all(d not in todo for d, _ in f.deps):
                    ordered.append(f)
                    todo.remove(f)
                    break
            else:
                raise RuntimeError('cyclic deps in gap')
        if g == n - 1:
            ordered += list(reserve_last)
        for f in ordered:
            pos[f] = len(out)
            out.append(f)
    for i, op in enumerate(out):
        if op.kind == 'wait' and op.needs is not None:
            lastneed = max([pos[d] for d in op.needs], default=-1)
            assert lastneed < i
            op.n = sum(1 for o in out[lastneed + 1:i] if o.kind == 'ds')
            assert op.n <= 15, ('lgkmcnt too large', op.name, op.n)
    return out


def model_cycles(seq):
    total = 0
    cur = None
    under = 0
    prev = None
    for op in seq:
        if op.kind == 'mfma':
            if cur is not None:
                total += max(16, cur)
                under += max(0, 16 - cur)
            cur = 8
        else:
            c = op.cost
            if op.kind in ('ds', 'vmem') and prev is not None and prev.kind in ('valu', 'trans'):
                c += 8
            if cur is None:
                total += c
            else:
                cur += c
        prev = op
    if cur is not None:
        total += max(16, cur)
        under += max(0, 16 - cur)
    return total, under


PASS_KINDS = ('Q', 'OST', 'X', 'LX', 'OT', 'L')


def shift(tag, ctx):
    p, it = ctx
    kind = tag[0]
    if kind.endswith('i'):
        return (kind[:-1], tag[1] + p, tag[2] + 2 * it) + tuple(tag[3:])
    if kind.endswith('j'):
        return (kind[:-1], tag[1] + p, tag[2] + it) + tuple(tag[3:])
    if kind in PASS_KINDS:
        return (kind, tag[1] + p) + tuple(tag[2:])
    return (kind, tag[1] + 16 * p + 4 * it) + tuple(tag[2:])


def keyof(key, ctx):
    if key[0].endswith('i'):
        return (key[0][:-1], key[1] + 2 * ctx[1])
    if key[0].endswith('j'):
        return (key[0][:-1], key[1] + ctx[1])
    return key[0:2]


def check_trace(trace, name=''):
    errs = []
    tags = {}
    last_w = {}
    last_c = {}
    last_st = {}
    ds_q = []
    vm_q = []
    pend = {}
    lds = {}
    nbar = 0
    for i, (op, sh) in enumerate(trace):
        if op.kind == 'label':
            continue
        if op.kind == 'wait':
            t = op.render()
            m = re.search(r'lgkmcnt\((\d+)\)', t)
            if m:
                k = int(m.group(1))
                while len(ds_q) > k:
                    j, o, c = ds_q.pop(0)
                    for r in o.wr:
                        if pend.get(r) == j:
                            del pend[r]
                    for key in (o.lds_r or []):
                        st = lds.setdefault(keyof(key, c), {})
                        st['rd_out'] = st.get('rd_out', 0) - 1
                        st['rd_done_bar'] = nbar
                    for key in (o.lds_w or []):
                        st = lds.setdefault(keyof(key, c), {})
                        st['w_out'] = st.get('w_out', 0) - 1
                        st['w_done_bar'] = nbar
            m = re.search(r'vmcnt\((\d+)\)', t)
            if m:
                k = int(m.group(1))
                while len(vm_q) > k:
                    j, o, c = vm_q.pop(0)
                    for r in o.wr:
                        if pend.get(r) == j:
                            del pend[r]
                    for key in (o.lds_w or []):
                        st = lds.setdefault(keyof(key, c), {})
                        st['dma_out'] = st.get('dma_out', 0) - 1
                        st['w_done_bar'] = nbar
            continue
        if op.kind == 'bar':
            nbar += 1
            continue
        for r in op.rd + op.wr:
            if r in pend and not (r == 'v53'):
                errs.append(f'{i}: {op.render()} touches {r} with a load in flight')
        for r, t in op.rtag.items():
            want = shift(t, sh)
            if want[0] in ('OT',) and want[1] < 0:
                continue
            if tags.get(r) != want:
                errs.append(f'{i}: {op.render()} reads {r}: have {tags.get(r)} want {want}')
        def dist(j):
            return sum(1 if o.kind != 'nop' else o.nstates for o, _ in trace[j + 1:i] if o.kind != 'label')
        for r in op.rd:
            if r in last_w:
                j, w = last_w[r]
                if i - j > 40:
                    continue
                need = 0
                if w.kind == 'mfma':
                    big = 12 if 'smfmac' in w.text else 8
                    if op.kind == 'mfma':
                        isc = r in getattr(op, 'cregs', [])
                        need = 0 if (isc and op.wr == w.wr) else big
                    else:
                        need = big
                elif w.kind in ('valu', 'trans'):
                    if op.kind == 'mfma':
                        need = 2
                    elif w.kind == 'trans' and op.kind == 'valu':
                        need = 1
                    elif r[0] == 's' or r == 'vcc':
                        need = 5
                    elif 'readfirstlane' in op.text or 'readlane' in op.text:
                        need = 1
                    elif 'permlane' in op.text:
                        need = 2
                elif w.kind == 'salu' and r == 'm0':
                    need = 1
                if need and dist(j) < need:
                    errs.append(f'{i}: {op.render()} reads {r} {dist(j)} states after {w.render()} (needs {need})')
        for r in op.wr:
            if r in last_w:
                j, w = last_w[r]
                if i - j <= 40 and w.kind == 'mfma' and op.kind != 'mfma':
                    big = 12 if 'smfmac' in w.text else 8
                    if dist(j) < big:
                        errs.append(f'{i}: {op.render()} overwrites {r} {dist(j)} states after {w.render()}')
                if i - j <= 40 and w.kind == 'mfma' and op.kind == 'mfma' and op.wr != w.wr and dist(j) < 8:
                    errs.append(f'{i}: {op.render()} WAW {r} after {w.render()}')
            if r in last_c and op.kind in ('valu', 'trans') and i - last_c[r] <= 40 and dist(last_c[r]) < 7:
                errs.append(f'{i}: {op.render()} overwrites SrcC {r} too early')
            if r in last_st and i - last_st[r] <= 40 and dist(last_st[r]) < 2:
                errs.append(f'{i}: {op.render()} overwrites store data {r} too early')
        for key in (op.lds_r or []):
            st = lds.setdefault(keyof(key, sh), {})
            if st.get('dma_out', 0) > 0:
                errs.append(f'{i}: {op.render()} reads LDS {key} while a DMA is in flight')
            if key[2] and (st.get('w_out', 0) > 0 or st.get('w_done_bar', -1) >= nbar):
                errs.append(f'{i}: {op.render()} reads shared LDS {key} without a barrier after the write')
            if key[3] is not None and st.get('tag') != shift(key[3], sh) and not (
                    shift(key[3], sh)[0] == 'OST' and shift(key[3], sh)[1] < 0):
                errs.append(f'{i}: {op.render()} reads LDS {key}: have {st.get("tag")} want {shift(key[3], sh)}')
            st['rd_out'] = st.get('rd_out', 0) + 1
            st['rd_shared'] = st.get('rd_shared', False) or key[2]
        for key in (op.lds_w or []):
            st = lds.setdefault(keyof(key, sh), {})
            newtag = shift(key[3], sh) if key[3] is not None else None
            if st.get('tag') != newtag:
                if op.kind == 'vmem' and st.get('rd_out', 0) > 0:
                    errs.append(f'{i}: {op.render()} DMA into LDS {key} with reads outstanding')
                if op.kind == 'vmem' and st.get('w_out', 0) > 0:
                    errs.append(f'{i}: {op.render()} DMA into LDS {key} with writes outstanding')
                if op.kind == 'ds' and st.get('dma_out', 0) > 0:
                    errs.append(f'{i}: {op.render()} LDS write {key} with DMA outstanding')
                if st.get('rd_shared') and (st.get('rd_out', 0) > 0 or st.get('rd_done_bar', -1) >= nbar):
                    errs.append(f'{i}: {op.render()} overwrites shared LDS {key} without a barrier after the reads')
                st['rd_shared'] = False
            st['tag'] = newtag
            if op.kind == 'vmem':
                st['dma_out'] = st.get('dma_out', 0) + 1
            else:
                st['w_out'] = st.get('w_out', 0) + 1
        if op.kind == 'ds':
            ds_q.append((i, op, sh))
            for r in op.wr:
                pend[r] = i
        elif op.kind == 'vmem':
            vm_q.append((i, op, sh))
            if len(vm_q) > 63:
                errs.append(f'{i}: more than 63 VMEM ops outstanding')
            for r in op.wr:
                pend[r] = i
            if 'store' in op.text:
                for r in op.rd[:4]:
                    last_st[r] = i
        else:
            for r in op.wr:
                last_w[r] = (i, op)
        if op.kind in ('ds', 'vmem'):
            for r in op.wr:
                last_w.pop(r, None)
        for r in getattr(op, 'cregs', []):
            last_c[r] = i
        for r in op.wr:
            tags.pop(r, None)
        for r, t in op.wtag.items():
            tags[r] = shift(t, sh)
    if errs:
        print(f'== {name}: {len(errs)} problems')
        for e in errs[:40]:
            print('   ', e)
    return errs


def resolve_vm_waits(traces):
    for tr in traces:
        for op, _ in tr:
            if op.kind == 'wait' and op.vmclass is not None:
                op.n = 63
    for tr in traces:
        seq = []
        for op, _ in tr:
            if op.kind == 'vmem':
                seq.append(op.vmclass)
            elif op.kind == 'wait' and op.vmclass is not None:
                k = 0
                found = False
                for c in reversed(seq):
                    if c == op.vmclass or op.vmclass == 'all':
                        found = True
                        break
                    k += 1
                if found:
                    op.n = min(op.n, k)
```

```python
def slow_path(g):
    L = []
    A = L.append
    rng = g.rng
    sP, sH, sR, sN, sT, sSO, sX = 72, 73, 74, 75, 76, 77, 78
    vRow, vRow2, vVs, vM, vL, vA, vB = 64, 65, 66, 67, 68, 69, 70
    QF, KF, S, P, O, VF = 72, 88, 120, 128, 132, 164
    K0, V0, Q0, Od = g.sK[0], g.sV[0], g.sQd[0], g.sOd

    def across(op, reg):
        for swap in ('v_permlane32_swap_b32', 'v_permlane16_swap_b32'):
            A(f'v_mov_b32 v{vA}, v{reg}')
            A(f'v_mov_b32 v{vB}, v{reg}')
            A('s_nop 1')
            A(f'{swap} v{vA}, v{vB}')
            A('s_nop 1')
            A(f'{op} v{reg}, v{vA}, v{vB}')

    def k_tile():
        for kb in range(2):
            for ds in range(4):
                A(f'buffer_load_dwordx4 {rng("v", KF + 16 * kb + 4 * ds, 4)}, v{vRow2 if kb else vRow}, {rng("s", K0, 4)}, s{sSO} offen offset:{64 * ds}')

    def qk():
        for kb in range(2):
            for ds in range(4):
                d = rng('v', S + 4 * kb, 4)
                A(f'v_mfma_f32_16x16x32_bf16 {d}, {rng("v", KF + 16 * kb + 4 * ds, 4)}, {rng("v", QF + 4 * ds, 4)}, {d if ds else 0}')
        A('s_nop 15')

    A('s_waitcnt vmcnt(0)')
    A('s_barrier')
    A(f's_cmp_eq_u32 s{g.sFAIL}, 0')
    A('s_cbranch_scc1 L_end')
    A('L_slow:')
    A(f'v_mbcnt_lo_u32_b32 v{vA}, -1, 0')
    A(f'v_mbcnt_hi_u32_b32 v{vA}, -1, v{vA}')
    A(f'v_and_b32 v{vRow}, 15, v{vA}')
    A(f'v_lshlrev_b32 v{vRow}, 8, v{vRow}')
    A(f'v_lshrrev_b32 v{vB}, 4, v{vA}')
    A(f'v_lshl_add_u32 v{vRow}, v{vB}, 4, v{vRow}')
    A(f'v_add_u32 v{vRow2}, 0x1000, v{vRow}')
    A(f'v_and_b32 v{vVs}, 0x3ff, v{g.vV[0][0]}')
    A(f'v_add_u32 v{vVs}, s{g.sSTG}, v{vVs}')
    A(f's_mov_b32 s{sP}, 0')
    A('L_slow_pass:')
    A(f's_lshr_b32 s{sT}, s{g.sFAIL}, s{sP}')
    A(f's_and_b32 s{sT}, s{sT}, 1')
    A(f's_cmp_eq_u32 s{sT}, 0')
    A('s_cbranch_scc1 L_slow_next')
    A(f's_add_u32 s{sT}, s{g.sH0}, s{sP}')
    A(f's_lshl_b32 s{sH}, s{sT}, 17')
    A(f's_mul_i32 s{sX}, s{sT}, {g.QH}')
    A(f's_add_u32 s{sT}, s{g.sROLE}, s{sP}')
    A(f's_and_b32 s{sT}, s{sT}, 1')
    A(f's_cmp_eq_u32 s{sT}, 0')
    A(f's_cselect_b32 s{sR}, 7, 6')
    A(f's_lshl_b32 s{sR}, s{sR}, 12')
    A(f's_mul_i32 s{sR}, s{sR}, s{g.sW}')
    A(f's_add_u32 s{sR}, s{sR}, s{sX}')
    A(f's_mov_b32 s{sN}, 7')
    A(f's_cmp_eq_u32 s{sT}, 0')
    A('s_cbranch_scc1 L_slow_own')
    A(f's_add_u32 s{sR}, s{sR}, {448 * 256}')
    A(f's_add_u32 s{sX}, s{sX}, {832 * 256}')
    A(f's_cmp_eq_u32 s{g.sW}, 0')
    A(f's_cselect_b32 s{sN}, 7, 6')
    A('s_branch L_slow_unit')
    A('L_slow_own:')
    A(f's_add_u32 s{sX}, s{sR}, {96 * 256}')
    A('L_slow_unit:')
    A(f's_sub_u32 s{sN}, s{sN}, 1')
    A(f's_cmp_eq_u32 s{sN}, 6')
    A(f's_cselect_b32 s{sT}, s{sX}, s{sR}')
    A(f's_cselect_b32 s{sSO}, 0, 0x1000')
    A(f's_add_u32 s{sR}, s{sR}, s{sSO}')
    A(f's_mov_b32 s{sX}, s{sT}')
    for ds in range(4):
        A(f'buffer_load_dwordx4 {rng("v", QF + 4 * ds, 4)}, v{vRow}, {rng("s", Q0, 4)}, s{sX} offen offset:{64 * ds}')
    A(f'v_mov_b32 v{vM}, 0xff800000')
    A(f's_mov_b32 s{sSO}, s{sH}')
    A(f's_mov_b32 s{sT}, 16')
    A('L_slow_max:')
    k_tile()
    A('s_waitcnt vmcnt(0)')
    qk()
    for e in range(0, 8, 2):
        A(f'v_max3_f32 v{vM}, v{vM}, v{S + e}, v{S + e + 1}')
    A(f's_add_u32 s{sSO}, s{sSO}, 8192')
    A(f's_sub_u32 s{sT}, s{sT}, 1')
    A(f's_cmp_lg_u32 s{sT}, 0')
    A('s_cbranch_scc1 L_slow_max')
    across('v_max_f32', vM)
    A(f'v_mul_f32 v{vM}, s{g.sC}, v{vM}')
    A(f'v_mov_b32 v{vL}, 0')
    for i in range(32):
        A(f'v_mov_b32 v{O + i}, 0')
    A(f's_mov_b32 s{sSO}, s{sH}')
    A(f's_mov_b32 s{sT}, 16')
    A('L_slow_acc:')
    k_tile()
    for kb in range(2):
        for m in range(4):
            A(f's_add_u32 m0, s{g.sSTG}, {(4 * kb + m) * 1024}')
            A(f's_add_u32 s79, s{sSO}, {kb * 4096 + m * 64 + 2048}')
            A(f'buffer_load_dwordx4 v{g.vDMA}, {rng("s", V0, 4)}, s79 offen lds')
    A('s_waitcnt vmcnt(0)')
    for blk in range(8):
        for kb in range(2):
            A(f'ds_read_b64_tr_b16 {rng("v", VF + 4 * blk + 2 * kb, 2)}, v{vVs} offset:{(4 * kb + (blk >> 1)) * 1024 + 8 * (blk & 1)}')
    qk()
    for e in range(8):
        A(f'v_fma_f32 v{S + e}, v{S + e}, s{g.sC}, -v{vM}')
    for e in range(8):
        A(f'v_exp_f32 v{S + e}, v{S + e}')
    A('s_nop 0')
    for e in range(8):
        A(f'v_add_f32 v{vL}, v{vL}, v{S + e}')
    for k in range(4):
        A(f'v_cvt_pk_bf16_f32 v{P + k}, v{S + 2 * k}, v{S + 2 * k + 1}')
    A('s_waitcnt lgkmcnt(0)')
    A('s_nop 1')
    for blk in range(8):
        d = rng('v', O + 4 * blk, 4)
        A(f'v_mfma_f32_16x16x32_bf16 {d}, {rng("v", VF + 4 * blk, 4)}, {rng("v", P, 4)}, {d}')
    A(f's_add_u32 s{sSO}, s{sSO}, 8192')
    A(f's_sub_u32 s{sT}, s{sT}, 1')
    A(f's_cmp_lg_u32 s{sT}, 0')
    A('s_cbranch_scc1 L_slow_acc')
    across('v_add_f32', vL)
    A(f'v_rcp_f32 v{vL}, v{vL}')
    A('s_nop 7')
    for i in range(32):
        A(f'v_mul_f32 v{O + i}, v{O + i}, v{vL}')
    for m in range(4):
        for i in range(4):
            A(f'v_cvt_pk_bf16_f32 v{O + 8 * m + i}, v{O + 8 * m + 2 * i}, v{O + 8 * m + 2 * i + 1}')
    for m in range(4):
        A(f'buffer_store_dwordx4 {rng("v", O + 8 * m, 4)}, v{vRow}, {rng("s", Od, 4)}, s{sX} offen offset:{64 * m}')
    A('s_waitcnt vmcnt(0)')
    A(f's_cmp_lg_u32 s{sN}, 0')
    A('s_cbranch_scc1 L_slow_unit')
    A('L_slow_next:')
    A(f's_add_u32 s{sP}, s{sP}, 1')
    A(f's_cmp_lt_u32 s{sP}, 4')
    A('s_cbranch_scc1 L_slow_pass')
    return L
```

```python
import re
import struct
import sys
from sched import Op, regs, rng, schedule, model_cycles, check_trace, resolve_vm_waits

NAME = 'standalone__mha_softmax__near_ridge_kernel'
QH = 848 * 256
KH = 512 * 256
QBYTES = 512 * QH
OOB = 0x80000000

CFG = dict(dbgtime=0, codepf=0, pf=False, pf_ahead=5, q_nt=False, o_nt=False, kv_nt=False, tries=1, seed=0, vstep=10, epi_inter=1, anneal=150000, slow=True, stamp=False)

vS = [0, 8]
vP = [16, 20, 24]
vSA = 28
vD = [32, 36, 40, 44]
vIDX, vDMA, vQR, vLIN, vPF, vDUM, vT, vCHK = 48, 49, 50, 51, 52, 53, 54, 55
vK = [[56, 57], [58, 59]]
vV = [[60, 61], [62, 63]]


def Oreg(u):
    return ('v', 64 + 32 * u) if u < 6 else ('a', 112)


def aQ(u):
    return 16 * u


aK = 144
aV = [176, 208]
aT = 240

sK = [4, 8]
sV = [12, 16]
sQd = [20, 24, 28, 32]
sOd = 36
sPFd = 40
sKV, sPF, sQ, sQL, sO, sQM = 44, 45, 46, 47, 48, 49
sM0 = [50, 51, 52, 53]
sSTG, sLOOP, sPASS, sC, sLO, sHI, sFAIL, sW = 54, 55, 56, 57, 58, 59, 60, 61
sCUR = {'A': 62, 'B': 63}
sLATE = {'A': 64, 'B': 65}
sROLE, sH0 = 66, 67
sT0, sT1, sT2, sT3 = 68, 69, 70, 71
sTS = 72

STG = 65536
SLOT = 16384

_REG = re.compile(r'\b([vas])(\d+)\b|\b([vas])\[(\d+):(\d+)\]|\b(m0|vcc|exec)\b')


def _parse(operand):
    out = []
    for m in _REG.finditer(operand):
        if m.group(1):
            out.append(m.group(1) + m.group(2))
        elif m.group(3):
            out += regs(m.group(3), int(m.group(4)), int(m.group(5)) - int(m.group(4)) + 1)
        else:
            out.append(m.group(6))
    return out


def mk(text, **kw):
    mn, _, rest = text.partition(' ')
    ops = [o.strip() for o in rest.split(',')] if rest else []
    allr = [_parse(o) for o in ops]
    flat = lambda l: [r for x in l for r in x]
    cregs = []
    if mn.startswith('v_mfma'):
        kind, wr, rd = 'mfma', allr[0], flat(allr[1:])
        cregs = allr[3]
    elif mn.startswith('v_smfmac'):
        kind, wr, rd = 'mfma', allr[0], flat(allr)
        cregs = allr[0]
    elif mn.startswith('v_'):
        kind = 'trans' if re.match(r'v_(exp|rcp|log|rsq|sqrt)_', mn) else 'valu'
        wr, rd = allr[0], flat(allr[1:])
        if 'permlane' in mn:
            wr = rd = flat(allr)
        if mn.startswith('v_cndmask') and 'vcc' not in rd and len(ops) < 4:
            rd = rd + ['vcc']
    elif mn.startswith('ds_read'):
        kind, wr, rd = 'ds', allr[0], flat(allr[1:])
    elif mn.startswith('ds_'):
        kind, wr, rd = 'ds', [], flat(allr)
    elif mn.startswith('buffer_load') and ' lds' in text:
        kind, wr, rd = 'vmem', [], flat(allr) + ['m0']
    elif mn.startswith('buffer_load'):
        kind, wr, rd = 'vmem', allr[0], flat(allr[1:])
    elif mn.startswith('buffer_store'):
        kind, wr, rd = 'vmem', [], flat(allr)
    elif mn == 's_waitcnt':
        kind, wr, rd = 'wait', [], []
    elif mn == 's_barrier':
        kind, wr, rd = 'bar', [], []
    elif mn == 's_nop':
        kind, wr, rd = 'nop', [], []
    elif mn.startswith('s_cbranch') or mn in ('s_branch', 's_endpgm'):
        kind, wr, rd = 'branch', [], []
    elif mn.startswith('s_cmp'):
        kind, wr, rd = 'salu', [], flat(allr)
    elif mn.startswith('s_'):
        kind, wr, rd = 'salu', allr[0], flat(allr[1:])
    elif mn.endswith(':') or mn.startswith('.') or mn.startswith(';'):
        kind, wr, rd = 'label', [], []
    else:
        raise ValueError(text)
    op = Op(text, kind, rd=rd, wr=wr, **kw)
    op.cregs = cregs
    if kind == 'nop':
        op.nstates = int(rest) + 1
    return op


def lgkm(needs, **kw):
    return Op('', 'wait', needs=list(needs), **kw)


def vmw(cls, **kw):
    return Op('', 'wait', vmclass=cls, **kw)


class Step:
    def __init__(self, typ, t, u):
        self.typ, self.t, self.u = typ, t, u
        tt = t % 16
        self.half = (typ == 'B' and u == 6)
        pos = units(typ, tt).index(u)
        idx = 7 * tt + pos if typ == 'A' else 13 * (tt >> 1) + 7 * (tt & 1) + pos
        self.sb = vS[idx & 1]
        self.pb = vP[2] if u == 6 else vP[u & 1]
        self.ne = 4 if self.half else 8
        self.first = (tt == 0)
        self.qp = 0 if 0 <= t < 16 else (1 if t >= 16 else -1)
        self.prev_t = t - 2 if self.half else t - 1


def units(typ, t):
    if typ == 'A':
        return list(range(7))
    return [0, 1, 6, 2, 3, 4, 5] if t % 2 == 0 else list(range(6))


def other(typ):
    return 'B' if typ == 'A' else 'A'


def step_before(typ, t, u):
    us = units(typ, t)
    if us.index(u) > 0:
        return Step(typ, t, us[us.index(u) - 1])
    if t > 0:
        return Step(typ, t - 1, units(typ, t - 1)[-1])
    return Step(other(typ), -1, units(other(typ), 15)[-1])


def step_after(typ, t, u):
    us = units(typ, t)
    if u != us[-1]:
        return Step(typ, t, us[us.index(u) + 1])
    if t < 15:
        return Step(typ, t + 1, 0)
    return Step(other(typ), 16, 0)


def qk_ops(st):
    out = []
    for kb in range(1 if st.half else 2):
        d = rng('v', st.sb + 4 * kb, 4)
        for ds in range(4):
            ka, qa = aK + 16 * kb + 4 * ds, aQ(st.u) + 4 * ds
            op = mk(f'v_mfma_f32_16x16x32_bf16 {d}, {rng("a", ka, 4)}, {rng("a", qa, 4)}, {d if ds else 0}',
                    rtag={f'a{ka}': ('K', st.t, kb, ds), f'a{qa}': ('Q', st.qp, st.u, ds)})
            if ds == 3:
                op.wtag = {f'v{st.sb + 4 * kb + e}': ('S', st.t, st.u, 4 * kb + e) for e in range(4)}
            out.append(op)
    return out


def ptags(st):
    tg = {f'v{st.pb + k}': ('P', st.t, st.u, k) for k in range(st.ne // 2)}
    if st.half:
        tg.update({f'v{st.pb + k}': ('L', st.qp, 'zero') for k in (2, 3)})
    return tg


def pv_ops(st):
    out = []
    kind, base = Oreg(st.u)
    for blk in range(8):
        d = rng(kind, base + 4 * blk, 4)
        va = aV[st.t & 1] + 4 * blk
        rt = {f'a{va}': ('V', st.t, blk, 0), f'a{va + 2}': ('V', st.t, blk, 1)}
        rt.update(ptags(st))
        if not st.first:
            rt[f'{kind}{base + 4 * blk}'] = ('O', st.prev_t, st.u, blk)
        out.append(mk(f'v_mfma_f32_16x16x32_bf16 {d}, {rng("a", va, 4)}, {rng("v", st.pb, 4)}, {0 if st.first else d}',
                      rtag=rt, wtag={f'{kind}{base + 4 * blk}': ('O', st.t, st.u, blk)}))
    return out


def smf_op(st):
    if st.u not in (1, 3, 5, 6):
        return None
    pair = st.u >> 1
    b = vP[1] if st.u == 6 else vP[0]
    rt = dict(ptags(st))
    if st.u != 6:
        rt.update(ptags(Step(st.typ, st.t, st.u - 1)))
    rt[f'v{vD[pair]}'] = ('L', st.qp, 'dz') if st.first else ('D', st.prev_t, pair)
    return mk(f'v_smfmac_f32_16x16x64_bf16 {rng("v", vD[pair], 4)}, {rng("v", vSA, 4)}, {rng("v", b, 8)}, v{vIDX}',
              rtag=rt, wtag={f'v{vD[pair]}': ('D', st.t, pair)})


def m_op(st, e, **kw):
    r = f'v{st.sb + e}'
    return mk(f'v_mul_f32 {r}, s{sC}, {r}', rtag={r: ('S', st.t, st.u, e)}, wtag={r: ('M', st.t, st.u, e)}, **kw)


def e_op(st, e, **kw):
    r = f'v{st.sb + e}'
    return mk(f'v_exp_f32 {r}, {r}', rtag={r: ('M', st.t, st.u, e)}, wtag={r: ('E', st.t, st.u, e)}, **kw)


def c_op(st, k, **kw):
    a, b = f'v{st.sb + 2 * k}', f'v{st.sb + 2 * k + 1}'
    return mk(f'v_cvt_pk_bf16_f32 v{st.pb + k}, {a}, {b}',
              rtag={a: ('E', st.t, st.u, 2 * k), b: ('E', st.t, st.u, 2 * k + 1)},
              wtag={f'v{st.pb + k}': ('P', st.t, st.u, k)}, **kw)


def kvkeys(t):
    return [('kv', (t & 2) + j, True, ('KV', (t & ~1) + j)) for j in (0, 1)]


def k_read(t, kb, ds, **kw):
    ka = aK + 16 * kb + 4 * ds
    off = ((t >> 1) & 1) * 32768 + (ds >> 1) * 4096 + (ds & 1) * 1024
    return mk(f'ds_read_b128 {rng("a", ka, 4)}, v{vK[t & 1][kb]} offset:{off}', wtag={f'a{ka}': ('K', t, kb, ds)},
              lds_r=kvkeys(t), **kw)


def v_read(t, blk, kb, **kw):
    m, b = blk >> 1, blk & 1
    va = aV[t & 1] + 4 * blk + 2 * kb
    off = ((t >> 1) & 1) * 32768 + (m >> 1) * 4096 + 2048 + (m & 1) * 1024 + 8 * b
    return mk(f'ds_read_b64_tr_b16 {rng("a", va, 2)}, v{vV[t & 1][kb]} offset:{off}',
              wtag={f'a{va}': ('V', t, blk, kb)}, lds_r=kvkeys(t), **kw)


def nt(flag):
    return ' nt' if CFG[flag] else ''


def kv_dma(t, k, **kw):
    srd = [sK[0], sK[1], sV[0], sV[1]][k]
    return mk(f'buffer_load_dwordx4 v{vDMA}, {rng("s", srd, 4)}, s{sKV} offen offset:{1024 * k}{nt("kv_nt")} lds',
              vmclass='kv', lds_w=[('kv', t & 3, True, ('KV', t))], **kw)


def q_dma(x, soff, key, cls, **kw):
    return mk(f'buffer_load_dwordx4 v{vDMA}, {rng("s", sQd[x], 4)}, s{soff} offen offset:{1024 * x}{nt("q_nt")} lds',
              vmclass=cls, lds_w=[key], **kw)


def q_read(u, slot, x, qp, **kw):
    qa = aQ(u) + 4 * x
    return mk(f'ds_read_b128 {rng("a", qa, 4)}, v{vQR} offset:{slot * 4096 + x * 1024}',
              wtag={f'a{qa}': ('Q', qp, u, x)}, lds_r=[('stg', slot, False, ('Q', qp, u))], **kw)


def o_store(reg, x, soff, **kw):
    return mk(f'buffer_store_dwordx4 {rng("a", reg, 4)}, v{vDMA}, {rng("s", sOd, 4)}, s{soff} offen offset:{64 * x}{nt("o_nt")}',
              vmclass='st', **kw)


def region(typ, t, u0, u1):
    best = None
    for seed in range(CFG['seed'], CFG['seed'] + CFG['tries']):
        seq = region1(typ, t, u0, u1, 2, CFG['anneal'], seed)
        c = model_cycles(seq)[0]
        if best is None or c < best[0]:
            best = (c, seq)
    return best[1]


def region1(typ, t, u0, u1, lag, anneal, seed):
    us = units(typ, t)
    steps = [Step(typ, t, u) for u in us[u0:u1]]
    closes_tile = (steps[-1].u == us[-1])
    bb = []
    info = []
    for st in steps:
        nxt, prv = step_after(typ, t, st.u), step_before(typ, t, st.u)
        g0 = len(bb)
        qk = qk_ops(nxt)
        smf = smf_op(prv)
        bb += qk[:4]
        smf_i = None
        if smf is not None:
            smf_i = len(bb)
            bb.append(smf)
        kb1 = len(bb)
        bb += qk[4:]
        pv0 = len(bb)
        bb += pv_ops(prv)
        info.append(dict(st=st, nxt=nxt, prv=prv, g0=g0, smf=smf_i, kb1=kb1, pv0=pv0, end=len(bb) - 1,
                         smf_b=(vP[1] if prv.u == 6 else vP[0])))
    n = len(bb)
    F = []
    m0_of = {}
    for i, inf in enumerate(info):
        st, g0, end = inf['st'], inf['g0'], inf['end']
        L = end - g0 + 1
        nx = info[i + 1] if i + 1 < len(info) else None
        pv = info[i - 1] if i > 0 else None
        E = []
        for e in range(st.ne):
            tg = g0 + (e * L) // st.ne
            if e == 0:
                mdep = m0_of.get(i)
            else:
                lo = 0
                if pv is not None:
                    lo = (pv['g0'] + 3 + 4) if e < 4 else (pv['pv0'] - 1 + 4)
                mdep = m_op(st, e, lo=lo, tgt=tg - 1)
                F.append(mdep)
            eo = e_op(st, e, tgt=tg, deps=[(mdep, 1)] if mdep is not None else [])
            F.append(eo)
            E.append(eo)
        for k in range(st.ne // 2):
            hi = end
            if nx is not None and k >= 2:
                hi = min(nx['kb1'] - 1, nx['pv0'] - 3)
                if nx['smf'] is not None:
                    hi = min(hi, nx['smf'] - 3)
            lo = max([j for j in range(end + 1) if f'v{st.pb + k}' in bb[j].rd], default=0)
            F.append(c_op(st, k, lo=lo, hi=hi, tgt=E[2 * k + 1].tgt + 1, deps=[(E[2 * k], 1), (E[2 * k + 1], 1)]))
        m0 = m_op(inf['nxt'], 0, lo=g0 + 3 + 4, hi=end, tgt=end - 1)
        F.append(m0)
        m0_of[i + 1] = m0
    last = info[-1]
    allds = []
    odd = t & 1
    bar = None
    cursor = 0
    tail = []
    if u0 == 0 and odd:
        w = vmw('kv', lo=0, hi=0, tgt=0)
        bar = mk('s_barrier', lo=0, hi=1, tgt=0, deps=[(w, 0)])
        F += [w, bar]
        cursor = 2
    bdep = [(bar, 0)] if bar is not None else []
    plan = []
    if closes_tile:
        if odd:
            plan += [('kv', t + 3), ('kv', t + 4)]
            if t == 15:
                plan.insert(1, ('late',))
            if CFG['pf']:
                plan.append(('pf',))
        if t == 0:
            plan += [('D', '', 0, (0, 1, 2, 3)), ('D', '', 1, (0, 1, 2, 3))]
        elif t == 1:
            plan.append(('D', '', 2, (0, 1, 2, 3)))
        elif t == 2:
            plan += [('R', 0), ('D', 'j', 3, (0, 1))]
        elif t == 4:
            plan += [('D', 'j', 3, (2, 3)), ('R', 1)]
    nvm = sum({'kv': 4, 'late': 4, 'pf': 1, 'R': 4}.get(p[0]) or len(p[3]) for p in plan)
    vstart = cursor + (8 if plan and plan[0][0] in ('D', 'late') else 0)
    step = min(CFG['vstep'], (n - 4 - vstart) / max(nvm, 1))
    slots = iter([int(vstart + i * step) for i in range(nvm)])
    prev = None
    m0user = None
    tmpuser = {}
    drainw = None
    q0 = []
    if t == 15 and closes_tile:
        q0 = [q_read(0, 0, x, 1, lo=0, tgt=x) for x in range(4)]
        F += q0
        allds += q0

    def chain(op, extra=()):
        nonlocal prev
        op.tgt = next(slots)
        if prev is not None:
            op.deps.append((prev, 0))
        op.deps += [(e, 0) for e in extra if e is not None]
        prev = op
        F.append(op)
        return op

    def set_m0(src):
        mv = mk(f's_mov_b32 m0, s{src}', tgt=(prev.tgt + 1 if prev else vstart - 1), deps=[(m0user, 0)] if m0user else [])
        F.append(mv)
        return mv

    kvadv = oadv = None
    for p in plan:
        if p[0] == 'kv':
            mv = set_m0(sM0[p[1] & 3])
            for k in range(4):
                m0user = chain(kv_dma(p[1], k, deps=[(mv, 1)] + bdep), [kvadv])
            kvadv = mk(f's_add_u32 s{sKV}, s{sKV}, 8192', tgt=prev.tgt + 1, deps=[(prev, 0)])
            F.append(kvadv)
        elif p[0] == 'pf':
            chain(mk(f'buffer_load_dword v{vDUM}, v{vPF}, {rng("s", sPFd, 4)}, s{sPF} offen', vmclass='pf'))
            F.append(mk(f's_add_u32 s{sPF}, s{sPF}, 16384', tgt=prev.tgt + 1, deps=[(prev, 0)]))
        elif p[0] == 'late':
            w = lgkm(q0, tgt=vstart - 1, deps=[(d, 0) for d in q0], name='q0')
            F.append(w)
            mv = set_m0(sSTG)
            for x in range(4):
                m0user = chain(q_dma(x, sQL, ('stg', 0, False, ('Q', 1, 6)), 'qlate', deps=[(mv, 1), (w, 0)]))
        elif p[0] == 'R':
            mv = set_m0(sQM)
            for x in range(4):
                m0user = chain(q_dma(x, sQ, ('stgi', p[1], False, ('Qi', 1, p[1])), 'q', deps=[(mv, 1)]), [drainw])
            F.append(mk(f's_add_u32 s{sQ}, s{sQ}, 4096', tgt=prev.tgt + 1, deps=[(prev, 0)]))
            F.append(mk(f's_add_u32 s{sQM}, s{sQM}, 4096', tgt=mv.tgt + 2, deps=[(mv, 0)]))
        else:
            _, sfx, k, xs = p
            base = max(prev.tgt - 2 if prev else 0, 0)
            rd = []
            for x in xs:
                rd.append(mk(f'ds_read_b128 {rng("a", aT + 4 * x, 4)}, v{vLIN} offset:{k * 4096 + x * 1024}', tgt=base,
                             deps=[(tmpuser[x], 1)] if x in tmpuser else [],
                             lds_r=[('stg' + sfx, k, False, ('OST' + sfx, -1, k))],
                             wtag={f'a{aT + 4 * x}': ('OT' + sfx, -1, k, x)}))
            F += rd
            allds += rd
            drainw = lgkm(rd, tgt=base + 8, deps=[(d, 0) for d in rd], name='drain')
            F.append(drainw)
            for x in xs:
                op = o_store(aT + 4 * x, x, sO)
                op.rtag = {f'a{aT + 4 * x}': ('OT' + sfx, -1, k, x)}
                tmpuser[x] = chain(op, [drainw, oadv])
            if xs[-1] == 3:
                oadv = mk(f's_add_u32 s{sO}, s{sO}, 4096', tgt=prev.tgt + 1, deps=[(prev, 0)])
                F.append(oadv)
            if t == 4:
                F.append(mk(f'v_add_u32 v{vLIN}, 0x1000, v{vLIN}', tgt=base + 12, deps=[(d, 0) for d in rd]))
    cursor = 0
    w1needs = []
    if closes_tile:
        if t == 15:
            for u in range(1, 6):
                lo = info[u - 1]['pv0'] - 1
                for x in range(4):
                    op = q_read(u, u, x, 1, lo=lo, tgt=lo + x)
                    F.append(op)
                    allds.append(op)
            w1needs += q0
            if typ == 'B':
                qr = lambda u: [o for o in allds if o.lds_r and o.lds_r[0][:2] == ('stg', u)]
                for blk in range(8):
                    slot = 1 + (blk >> 2)
                    lo = info[slot - 1]['pv0']
                    op = mk(f'ds_write_b128 v{vLIN}, {rng("a", 112 + 4 * blk, 4)} offset:{4096 + blk * 1024}', lo=lo,
                            tgt=lo + 4 + 4 * (blk & 3), deps=[(o, 0) for o in qr(slot)],
                            rtag={f'a{112 + 4 * blk}': ('O', 14, 6, blk)}, lds_w=[('stg', slot, True, ('X', 0))])
                    F.append(op)
                    allds.append(op)
                a1 = mk(f'v_add_f32 v{vD[3] + 3}, v{vD[3] + 1}, v{vD[3] + 3}', tgt=20, rtag={f'v{vD[3]}': ('D', 14, 3)})
                a1.rd.append(f'v{vD[3]}')
                lw = mk(f'ds_write_b32 v{vLIN}, v{vD[3] + 3} offset:{5 * 4096}', tgt=info[4]['pv0'] + 6,
                        deps=[(a1, 1)] + [(o, 0) for o in qr(5)], lds_w=[('stg', 5, True, ('LX', 0))])
                F += [a1, lw]
                allds.append(lw)
        tn = t + 1
        vlo0 = info[0]['pv0'] if u0 == 0 else 0
        span0 = max(vlo0 + 8, cursor - 4)
        span1 = info[-2]['g0'] - 1
        for i in range(16):
            blk, kb = i >> 1, i & 1
            lo = vlo0 + blk if u0 == 0 else 0
            op = v_read(tn, blk, kb, lo=lo, tgt=span0 + (i * (span1 - span0)) // 16, deps=list(bdep))
            F.append(op)
            allds.append(op)
        kr = []
        for kb in range(2):
            for ds in range(4):
                ka = f'a{aK + 16 * kb + 4 * ds}'
                lo = max(j for j in range(last['g0']) if ka in bb[j].rd)
                op = k_read(tn, kb, ds, lo=lo, tgt=lo + 1, deps=list(bdep))
                F.append(op)
                allds.append(op)
                kr.append(op)
        w1needs += kr[:4]
        w1 = lgkm(w1needs, lo=last['g0'] - 2, hi=last['g0'] - 1, tgt=last['g0'] - 1, deps=[(d, 0) for d in w1needs], name='w1')
        w2 = lgkm(allds, lo=last['kb1'] - 2, hi=last['kb1'] - 1, tgt=last['kb1'] - 1, deps=[(d, 0) for d in allds] + [(w1, 0)],
                  name='w2')
        F += [w1, w2]
    for f in F:
        if f.kind == 'vmem':
            f.soft = 0.1 if f.vmclass in ('kv', 'qlate') else 0.03
        elif f.kind == 'wait':
            f.soft = 0.03
        elif f.kind == 'ds':
            f.soft = 0.003
        else:
            f.soft = 0.01
    if t == 5:
        F.append(mk(f's_sub_u32 s{sLOOP}, s{sLOOP}, 1', tgt=n - 12, hi=n - 2))
        tail = [mk(f's_cmp_lg_u32 s{sLOOP}, 0'), mk(f's_cbranch_scc1 L_{typ}_loop')]
        for f in F:
            f.hi = min(f.hi, n - 2)
    if t == 14:
        F.append(mk(f'v_add_u32 v{vLIN}, {(-12288) & 0xffffffff:#x}, v{vLIN}', tgt=40, soft=0.001))
    if t == 15:
        tail = [mk(f's_cmp_eq_u32 s{sPASS}, 3'), mk(f's_cbranch_scc1 L_fin_{typ}')] + ([mk('s_branch L_A_S0')] if typ == 'B' else [])
        for f in F:
            f.hi = min(f.hi, n - 2)
    return schedule(bb, F, lag=lag, reserve_last=tail, anneal=anneal, seed=seed)


def pack_unit(out, u, slot, src=None, tlast=-1, inject=()):
    E = lambda s, **kw: out.append(mk(s, **kw))
    kind, base = Oreg(u)
    if kind == 'a':
        for i in range(32):
            E(f'v_accvgpr_read_b32 v{src + i}, a{base + i}',
              rtag={f'a{base + i}': ('O', tlast, u, i >> 2)} if i % 4 == 0 else None)
        base = src
    h = 1 if u == 6 else u & 1
    for m in range(4):
        b = base + 8 * m
        for i in range(4):
            tg = {f'v{b + 2 * i}': ('O', tlast, u, 2 * m + (i >> 1))} if (kind == 'v' and i % 2 == 0) else None
            E(f'v_pk_mul_f32 {rng("v", b + 2 * i, 2)}, {rng("v", b + 2 * i, 2)}, {rng("v", vD[u >> 1], 2)} '
              f'op_sel:[0,{h}] op_sel_hi:[1,{h}]', rtag=tg)
        for i in range(4):
            E(f'v_cvt_pk_bf16_f32 v{b + i}, v{b + 2 * i}, v{b + 2 * i + 1}')
        E(f'ds_write_b128 v{vQR}, {rng("v", b, 4)} offset:{slot * 4096 + m * 1024}',
          lds_w=[('stg', slot, False, ('OST', -1, slot))])
        if m < len(inject):
            out += inject[m]


def late_q(out):
    out.append(vmw('qlate'))
    for x in range(4):
        out.append(q_read(6, 0, x, 0))


def read_back(slot, reg):
    return [mk(f'ds_read_b128 {rng("a", reg + 4 * x, 4)}, v{vLIN} offset:{slot * 4096 + x * 1024}',
               lds_r=[('stg', slot, False, ('OST', -1, slot))]) for x in range(4)]


def epilogue(typ, final=False):
    out = []
    E = lambda s, **kw: out.append(mk(s, **kw))
    E(f'; ---- {"final " if final else ""}epilogue of a type {typ} pass')
    cur = sCUR[typ]
    if final:
        st = Step(typ, -1, units(typ, 15)[-1])
        E(f'L_fin_{typ}:')
        out.append(smf_op(st))
        out += pv_ops(st)
        E('s_nop 2')
    if typ == 'B':
        xa, xa3, la, la3 = [vP[2] + i for i in range(4)]
        E(f's_sub_u32 s{sT0}, {STG + 5 * 4096}, s{sSTG}')
        E(f's_lshl_b32 s{sT1}, s{sW}, 11')
        E(f's_sub_u32 s{sT1}, s{sT1}, {4 * 4096}')
        E(f'v_add_u32 v{la}, s{sT0}, v{vLIN}')
        E(f'v_add_u32 v{la3}, {3 * 24576:#x}, v{la}')
        E(f'v_add_u32 v{xa}, s{sT1}, v{la}')
        E(f'v_add_u32 v{xa3}, s{sT1}, v{la3}')
        E('s_barrier')
    for p in range(4 if typ == 'A' else 3):
        E(f'v_pk_add_f32 {rng("v", vD[p] + 2, 2)}, {rng("v", vD[p], 2)}, {rng("v", vD[p] + 2, 2)}', rtag={f'v{vD[p]}': ('D', -1, p)})
    ls = [vD[u >> 1] + 2 + (u & 1) for u in range(6)] + [vD[3] + 3]
    for u in range(7 if typ == 'A' else 6):
        E(f'v_rcp_f32 v{ls[u] - 2}, v{ls[u]}')
    for op, acc in (('max', vT), ('min', vCHK)):
        E(f'v_{op}3_u32 v{acc}, v{ls[0]}, v{ls[1]}, v{ls[2]}')
        E(f'v_{op}3_u32 v{acc}, v{acc}, v{ls[3]}, v{ls[4]}')

    def last_range():
        for op, acc in (('max', vT), ('min', vCHK)):
            E(f'v_{op}3_u32 v{acc}, v{acc}, v{ls[5]}, v{ls[6]}')

    pending = []

    def pack(u, slot, **kw):
        nonlocal pending
        if not final:
            return pack_unit(out, u, slot, **kw)
        kw.pop('inject', None)
        inj = [[], [mk('s_waitcnt lgkmcnt(2)')] + pending[:2], pending[2:3], pending[3:4]] if pending else []
        pack_unit(out, u, slot, inject=inj, **kw)
        out.extend(pending[4:])
        out.extend(read_back(slot, aQ(u)))
        pending = [mk(f's_add_u32 s{sO}, s{cur}, {4096 * u}')] + [o_store(aQ(u) + 4 * x, x, sO) for x in range(4)]

    E('; @stamp rcp')
    if typ == 'A':
        last_range()
        if final:
            for u in range(6):
                pack(u, 1 + u % 5)
            pack(6, 2, src=Oreg(0)[1])
        else:
            E(f's_add_u32 s{sO}, s{cur}, 4096')
            pack(0, 5)
            out += read_back(5, aT)
            pack(2, 1)
            E('; @stamp e2')
            st = [o_store(aT + 4 * x, x, cur) for x in range(4)]
            pack(3, 2, inject=[[mk('s_waitcnt lgkmcnt(5)'), st[0]]])
            pack(4, 3, inject=[[st[1]]])
            pack(5, 4, inject=[[st[2]]])
            E('; @stamp e5')
            late_q(out)
            E('; @stamp late')
            pack(1, 0)
            pack(6, 5, src=Oreg(0)[1], inject=[[st[3]]])
            E(f'v_mov_b64 {rng("v", vP[2] + 2, 2)}, 0', wtag={f'v{vP[2] + k}': ('L', 0, 'zero') for k in (2, 3)})
    else:
        xb = Oreg(3)[1]
        d = vD[3]
        pack(3, 3)
        for w in range(4):
            for b in range(2):
                a = f'v{xa} offset:{w * 24576 + b * 1024}' if w < 3 else f'v{xa3} offset:{b * 1024}'
                E(f'ds_read_b128 {rng("v", xb + 8 * w + 4 * b, 4)}, {a}',
                  lds_r=[('stg', 1, True, ('X', -1)), ('stg', 2, True, ('X', -1))])
        for w in range(4):
            a = f'v{la} offset:{w * 24576}' if w < 3 else f'v{la3}'
            E(f'ds_read_b32 v{d + w}, {a}', lds_r=[('stg', 5, True, ('LX', -1))])
        pack(4, 4)
        E(f's_waitcnt lgkmcnt({8 if final else 4})')
        E('s_barrier')
        E('; @stamp x')
        E(f'v_pk_add_f32 {rng("v", d + 2, 2)}, {rng("v", d, 2)}, {rng("v", d + 2, 2)}')
        for w in (1, 3):
            for i in range(4):
                a = xb + 8 * (w - 1) + 2 * i
                E(f'v_pk_add_f32 {rng("v", a, 2)}, {rng("v", a, 2)}, {rng("v", a + 8, 2)}')
        E(f'v_add_f32 v{d + 3}, v{d + 2}, v{d + 3}')
        E(f'v_rcp_f32 v{d + 1}, v{d + 3}')
        last_range()
        for i in range(4):
            a = xb + 2 * i
            E(f'v_pk_add_f32 {rng("v", a, 2)}, {rng("v", a, 2)}, {rng("v", a + 16, 2)}')
        for i in range(4):
            a = xb + 2 * i
            E(f'v_pk_mul_f32 {rng("v", a, 2)}, {rng("v", a, 2)}, {rng("v", d, 2)} op_sel:[0,1] op_sel_hi:[1,1]')
        for i in range(4):
            E(f'v_cvt_pk_bf16_f32 v{xb + i}, v{xb + 2 * i}, v{xb + 2 * i + 1}')
        E(f'v_lshlrev_b32 v{xb + 8}, 4, v{la}')
        E(f'v_and_b32 v{xb + 8}, 0xf00, v{xb + 8}')
        E(f'v_bfe_u32 v{xb + 9}, v{la}, 8, 2')
        E(f's_lshl_b32 s{sT0}, s{sW}, 6')
        E(f'v_lshl_add_u32 v{xb + 8}, v{xb + 9}, 4, v{xb + 8}')
        E(f's_add_u32 s{sT0}, s{sT0}, s{sLATE["B"]}')
        E(f'buffer_store_dwordx4 {rng("v", xb, 4)}, v{xb + 8}, {rng("s", sOd, 4)}, s{sT0} offen{nt("o_nt")}', vmclass='st')
        E('; @stamp e3')
        pack(1, 1)
        pack(2, 2)
        E('; @stamp e5')
        if not final:
            E(f's_mov_b32 s{sO}, s{cur}')
            late_q(out)
        E('; @stamp late')
        pack(0, 3 if final else 0)
        pack(5, 5)
    E('; @stamp e7')
    E(f'v_cmp_lt_u32 vcc, s{sHI}, v{vT}')
    E(f'v_cmp_gt_u32 s[{sT2}:{sT2 + 1}], s{sLO}, v{vCHK}')
    if final:
        E('s_waitcnt lgkmcnt(0)')
        out.extend(pending)
    else:
        for p in range(4):
            for i in (0, 2):
                E(f'v_mov_b64 {rng("v", vD[p] + i, 2)}, 0', wtag={f'v{vD[p]}': ('L', 0, 'dz')} if i == 0 else None)
    E(f's_lshl_b32 s{sT0}, 1, s{sPASS}')
    E(f's_or_b64 vcc, vcc, s[{sT2}:{sT2 + 1}]')
    E(f's_cselect_b32 s{sT0}, s{sT0}, 0')
    E(f's_or_b32 s{sFAIL}, s{sFAIL}, s{sT0}')
    if final:
        if typ == 'A':
            E('s_branch L_done')
        return out
    E(f's_add_u32 s{cur}, s{cur}, {2 * QH}')
    E(f's_add_u32 s{sLATE[typ]}, s{sLATE[typ]}, {2 * QH}')
    E(f's_add_u32 s{sPASS}, s{sPASS}, 1')
    E(f's_mov_b32 s{sQM}, s{sSTG}')
    E(f's_mov_b32 s{sLOOP}, 3')
    E(f's_cmp_lt_u32 s{sPASS}, 3')
    E(f's_cselect_b32 s{sQ}, s{cur}, {OOB:#x}')
    E(f's_cselect_b32 s{sQL}, s{sLATE[typ]}, {OOB:#x}')
    E('s_waitcnt lgkmcnt(8)')
    return out


def f32bits(x):
    return struct.unpack('<I', struct.pack('<f', x))[0]


def srd(E, s, ptr, bias, nrec):
    if bias:
        E(f's_sub_u32 s{s}, s{ptr}, {-bias}')
        E(f's_subb_u32 s{s + 1}, s{ptr + 1}, 0')
    else:
        E(f's_mov_b32 s{s}, s{ptr}')
        E(f's_mov_b32 s{s + 1}, s{ptr + 1}')
    if isinstance(nrec, str):
        E(f's_add_u32 s{s + 2}, {nrec}, {-bias}')
    else:
        E(f's_mov_b32 s{s + 2}, {nrec - bias}')
    E(f's_mov_b32 s{s + 3}, 0x20000')


def prologue(first):
    out = []
    E = lambda s, **kw: out.append(mk(s, **kw))
    pq, pk, pv, po = 80, 82, 84, 86
    E('s_cmp_ge_u32 s2, 256')
    E('s_cbranch_scc1 L_end')
    E(f's_load_dwordx4 s[{pq}:{pq + 3}], s[0:1], 0')
    E(f's_load_dwordx4 s[{pv}:{pv + 3}], s[0:1], 16')
    if CFG['codepf']:
        E(f's_getpc_b64 s[{sPFd}:{sPFd + 1}]')
        E('L_pc:')
        E(f's_mov_b32 s{sPFd + 2}, L_end-L_pc')
        E(f's_mov_b32 s{sPFd + 3}, 0x20000')
        E('v_lshlrev_b32 v1, 7, v0')
        E(f'buffer_load_dword v{vDUM}, v1, {rng("s", sPFd, 4)}, 0 offen', vmclass='pf')
        E('v_add_u32 v1, 0x8000, v1')
        E(f'buffer_load_dword v{vDUM}, v1, {rng("s", sPFd, 4)}, 0 offen', vmclass='pf')
    E('v_lshrrev_b32 v1, 6, v0')
    E('v_and_b32 v0, 63, v0')
    E(f'v_readfirstlane_b32 s{sW}, v1')
    E(f's_and_b32 s{sT0}, s2, 7')
    E(f's_lshr_b32 s{sT1}, s2, 3')
    E(f's_and_b32 s{sROLE}, s{sT1}, 1')
    E(f's_lshr_b32 s{sT1}, s{sT1}, 1')
    E(f's_lshl_b32 s{sT0}, s{sT0}, 6')
    E(f's_lshl_b32 s{sT1}, s{sT1}, 2')
    E(f's_add_u32 s{sH0}, s{sT0}, s{sT1}')
    E('v_lshrrev_b32 v2, 4, v0')
    E('v_lshlrev_b32 v3, 1, v2')
    E('v_mov_b32 v4, 0x78')
    E('v_bfe_u32 v5, v4, v3, 2')
    E('v_and_b32 v6, 3, v0')
    E('v_xor_b32 v6, v6, v5')
    E('v_lshrrev_b32 v7, 2, v0')
    E('v_lshlrev_b32 v8, 8, v7')
    E(f'v_lshl_add_u32 v{vDMA}, v6, 4, v8')
    E('v_lshl_add_u32 v9, v7, 2, v6')
    E('v_lshlrev_b32 v9, 4, v9')
    E('v_and_b32 v10, 15, v0')
    E('v_lshrrev_b32 v11, 2, v10')
    E('v_lshlrev_b32 v11, 1, v11')
    E('v_bfe_u32 v11, v4, v11, 2')
    E('v_xor_b32 v11, v11, v2')
    E('v_lshl_add_u32 v11, v10, 2, v11')
    E('v_lshlrev_b32 v11, 4, v11')
    E(f'v_lshlrev_b32 v{vPF}, 7, v0')
    E(f's_and_b32 s{sT0}, s{sW}, 1')
    E(f's_lshr_b32 s{sT1}, s{sW}, 1')
    for j in range(2):
        for kb in range(2):
            E(f's_xor_b32 s{sT2}, s{sT0}, {j}')
            E(f's_xor_b32 s{sT3}, s{sT1}, {kb}')
            E(f's_lshl_b32 s{sT2}, s{sT2}, 14')
            E(f's_lshl_b32 s{sT3}, s{sT3}, 13')
            E(f's_add_u32 s{sT2}, s{sT2}, s{sT3}')
            E(f'v_add_u32 v{vK[j][kb]}, s{sT2}, v11')
            E(f'v_add_u32 v{vV[j][kb]}, s{sT2}, v9')
    E(f's_mul_i32 s{sSTG}, s{sW}, 24576')
    E(f's_add_u32 s{sSTG}, s{sSTG}, {STG}')
    E(f'v_add_u32 v{vQR}, s{sSTG}, v11')
    E(f'v_lshl_add_u32 v{vLIN}, v0, 4, s{sSTG}')
    E(f's_lshl_b32 s{sM0[0]}, s{sW}, 12')
    for k in range(1, 4):
        E(f's_add_u32 s{sM0[k]}, s{sM0[0]}, {k * SLOT}')
    E(f's_lshl_b32 s{sKV}, s{sH0}, 17')
    E(f's_add_u32 s{sT2}, s{sKV}, {4 * KH}')
    E(f's_lshl_b32 s{sPF}, s{sT1}, 13')
    E(f's_add_u32 s{sPF}, s{sPF}, s{sKV}')
    E(f's_lshl_b32 s{sT1}, s{sT1}, 12')
    E(f's_lshl_b32 s{sT3}, s{sT0}, 7')
    E(f's_add_u32 s{sKV}, s{sKV}, s{sT1}')
    E(f's_add_u32 s{sKV}, s{sKV}, s{sT3}')
    E(f's_add_u32 s{sT1}, s{sH0}, s{sROLE}')
    E(f's_mul_i32 s{sT1}, s{sT1}, {QH}')
    E(f's_mul_i32 s{sT3}, s{sW}, {112 * 256}')
    E(f's_add_u32 s{sCUR["A"]}, s{sT1}, s{sT3}')
    E(f's_add_u32 s{sLATE["A"]}, s{sCUR["A"]}, {96 * 256}')
    E(f's_xor_b32 s{sT1}, s{sROLE}, 1')
    E(f's_add_u32 s{sT1}, s{sH0}, s{sT1}')
    E(f's_mul_i32 s{sT1}, s{sT1}, {QH}')
    E(f's_add_u32 s{sLATE["B"]}, s{sT1}, {832 * 256}')
    E(f's_mul_i32 s{sT3}, s{sW}, {96 * 256}')
    E(f's_add_u32 s{sT1}, s{sT1}, s{sT3}')
    E(f's_add_u32 s{sCUR["B"]}, s{sT1}, {448 * 256}')
    E('s_waitcnt lgkmcnt(0)')
    E('; @stamp srd')
    srd(E, sK[0], pk, 0, f's{sT2}')
    srd(E, sK[1], pk, -960, f's{sT2}')
    srd(E, sV[0], pv, -2048, f's{sT2}')
    srd(E, sV[1], pv, -3008, f's{sT2}')
    for x in range(4):
        srd(E, sQd[x], pq, -960 * x, QBYTES)
    srd(E, sOd, po, 0, QBYTES)
    if CFG['pf']:
        E(f's_cmp_eq_u32 s{sT0}, 0')
        E(f's_cselect_b64 s[{sPFd}:{sPFd + 1}], s[{pk}:{pk + 1}], s[{pv}:{pv + 1}]')
        E(f's_mov_b32 s{sPFd + 2}, s{sT2}')
        E(f's_mov_b32 s{sPFd + 3}, 0x20000')
    E(f's_cmp_eq_u32 s{sROLE}, 0')
    E(f's_cselect_b32 s{sQ}, s{sCUR["A"]}, s{sCUR["B"]}')
    E(f's_cselect_b32 s{sQL}, s{sLATE["A"]}, s{sLATE["B"]}')
    for t in (0, 1):
        E(f's_mov_b32 m0, s{sM0[t]}')
        E('s_nop 0')
        for k in range(4):
            out.append(kv_dma(t, k))
            out[-1].vmclass = 'kv01'
        E(f's_add_u32 s{sKV}, s{sKV}, 8192')
    E(f's_mov_b32 s{sQM}, s{sSTG}')
    for u in range(6):
        E(f's_mov_b32 m0, s{sQM}')
        E(f's_add_u32 s{sQM}, s{sQM}, 4096')
        for x in range(4):
            out.append(q_dma(x, sQ, ('stg', u, False, ('Q', 0, u)), f'q{u}'))
        E(f's_add_u32 s{sQ}, s{sQ}, 4096')
    E(f's_mov_b32 m0, s{sM0[3]}')
    E('s_nop 0')
    for x in range(4):
        out.append(q_dma(x, sQL, ('kv', 3, False, ('Q', 0, 6)), 'qlate'))
    E(f's_mov_b32 m0, s{sM0[2]}')
    E('s_nop 0')
    for k in range(4):
        out.append(kv_dma(2, k))
    E(f's_add_u32 s{sKV}, s{sKV}, 8192')
    if CFG['pf']:
        for k in range(1, (CFG['pf_ahead'] + 1) // 2):
            E(f's_add_u32 s{sPF}, s{sPF}, 16384')
            E(f'buffer_load_dword v{vDUM}, v{vPF}, {rng("s", sPFd, 4)}, s{sPF} offen', vmclass='pf')
        E(f's_add_u32 s{sPF}, s{sPF}, 16384')
    E('; @stamp issued')
    E(f's_mov_b32 s{sC}, {f32bits(1.4426950408889634 * 128 ** -0.5):#x}')
    E(f's_mov_b32 s{sLO}, {f32bits(2.0 ** -24):#x}')
    E(f's_mov_b32 s{sHI}, {f32bits(2.0 ** 48):#x}')
    E(f's_mov_b32 s{sFAIL}, 0')
    E(f's_mov_b32 s{sPASS}, 0')
    E(f's_mov_b32 s{sLOOP}, 3')
    E(f's_mov_b32 s{sO}, {OOB:#x}')
    E(f's_mov_b32 s{sQM}, s{sSTG}')
    E('v_lshrrev_b32 v12, 5, v0')
    E('v_and_b32 v13, 1, v0')
    E('v_xor_b32 v12, v12, v13')
    E('v_add_u32 v12, -1, v12')
    for i in range(4):
        E(f'v_and_b32 v{vSA + i}, 0x3f803f80, v12')
    E('v_bfe_u32 v13, v0, 1, 1')
    E('v_mul_u32_u24 v13, 0xaaaa, v13')
    E(f'v_add_u32 v{vIDX}, 0x4444, v13')
    for p in range(4):
        for i in range(4):
            E(f'v_mov_b32 v{vD[p] + i}, 0', wtag={f'v{vD[p]}': ('L', 0, 'dz')} if i == 0 else None)
    for k in range(4):
        E(f'v_mov_b32 v{vP[2] + k}, 0', wtag={f'v{vP[2] + k}': ('L', 0, 'zero')})
        E(f'v_mov_b32 v{vP[1] + k}, 0')
    out.append(vmw('kv01'))
    E('; @stamp kv')
    E('s_barrier')
    for kb in range(2):
        for ds in range(4):
            out.append(k_read(0, kb, ds))
    out.append(vmw('q0'))
    E('; @stamp q0')
    for x in range(4):
        out.append(q_read(0, 0, x, 0))
    E('s_waitcnt lgkmcnt(0)')
    s0, s1 = Step(first, 0, 0), Step(first, 0, 1)
    out += qk_ops(s0)
    for i in range(16):
        out.append(v_read(0, i >> 1, i & 1))
    out.append(vmw('q1'))
    for x in range(4):
        out.append(q_read(1, 1, x, 0))
    for e in range(8):
        out.append(m_op(s0, e))
    for e in range(8):
        out.append(e_op(s0, e))
    E('s_waitcnt lgkmcnt(0)')
    out += qk_ops(s1)
    for k in range(4):
        out.append(c_op(s0, k))
    for u in range(2, 6):
        out.append(vmw(f'q{u}'))
        for x in range(4):
            out.append(q_read(u, u, x, 0))
    E('; @stamp q5')
    E(f'v_subrev_u32 v{vT}, s{sSTG}, v{vQR}')
    E(f'v_add_u32 v{vT}, s{sM0[3]}, v{vT}')
    out.append(vmw('qlate'))
    for x in range(4):
        E(f'ds_read_b128 {rng("a", aQ(6) + 4 * x, 4)}, v{vT} offset:{x * 1024}', wtag={f'a{aQ(6) + 4 * x}': ('Q', 0, 6, x)},
          lds_r=[('kv', 3, False, ('Q', 0, 6))])
    out.append(m_op(s1, 0))
    E(f's_mov_b32 m0, s{sM0[3]}')
    E('s_waitcnt lgkmcnt(0)')
    for k in range(4):
        out.append(kv_dma(3, k))
    E(f's_add_u32 s{sKV}, s{sKV}, 8192')
    E(f's_cmp_eq_u32 s{sROLE}, 0')
    E(f's_cselect_b32 s{sQ}, s{sCUR["B"]}, s{sCUR["A"]}')
    E(f's_cselect_b32 s{sQL}, s{sLATE["B"]}, s{sLATE["A"]}')
    E('s_cbranch_scc1 L_A_rest')
    extra = [mk('s_branch L_B_rest')]
    return out, extra


def stamped(seq, name):
    k = len(seq)
    while k > 0 and (seq[k - 1].kind == 'branch' or seq[k - 1].text.startswith('s_cmp')):
        k -= 1
    out = [mk('s_memtime s[72:73]')]
    regs_ = [(72, name)]
    for o in seq[:k]:
        if o.text.startswith('; @stamp'):
            r = 86 + 2 * len(regs_)
            out.append(mk(f's_memtime s[{r}:{r + 1}]'))
            regs_.append((r, o.text[9:]))
        else:
            out.append(o)
    out.append(mk('s_waitcnt lgkmcnt(0)'))
    for r, nm in regs_:
        out += [mk(f'v_mov_b32 v{vT}, s{r}'), mk('s_add_u32 s74, s74, 4'),
                mk(f'buffer_store_dword v{vT}, off, s[76:79], s74', vmclass='dbg', name=nm), mk('s_nop 1')]
    return out + seq[k:]


def build(verbose=True):
    R = {}
    jobs = []
    for typ in 'AB':
        jobs += [((typ, 'S0'), (typ, 0, 0, 1)), ((typ, 'rest'), (typ, 0, 1, 7))]
        jobs += [((typ, t), (typ, t, 0, 7)) for t in (1, 2, 3, 4, 5, 14, 15)]
        R[typ, 'epi'] = epilogue(typ)
        R[typ, 'fin'] = epilogue(typ, True)
    import multiprocessing
    with multiprocessing.Pool(8) as pool:
        for (key, _), seq in zip(jobs, pool.starmap(region, [a for _, a in jobs])):
            R[key] = seq
    fin = [mk('L_done:')]
    pro, extra = prologue('A')
    if CFG['stamp']:
        for k in R:
            R[k] = R[k][:2] + stamped(R[k][2:], 'fin') if k[1] == 'fin' else stamped(R[k], f'{k[0]}{k[1]}')
        fin = fin[:1] + stamped(fin[1:] + [mk('s_waitcnt vmcnt(0)')], 'drain') + stamped([mk('s_nop 0')], 'end') + \
            [mk('s_memrealtime s[72:73]'), mk('s_waitcnt lgkmcnt(0)'), mk('s_sub_u32 s72, s72, s100'), mk(f'v_mov_b32 v{vT}, s72'),
             mk('s_and_b32 s74, s74, 0xfffffc00'), mk(f'buffer_store_dword v{vT}, off, s[76:79], s74', vmclass='dbg2'),
             mk(f'v_mov_b32 v{vT + 1}, s100'), mk(f'buffer_store_dword v{vT + 1}, off, s[76:79], s74 offset:1020', vmclass='dbg2')]
        setup = [mk('s_memrealtime s[100:101]'), mk('s_load_dwordx2 s[76:77], s[0:1], 40'), mk('s_mov_b32 s78, 0x100000'), mk('s_mov_b32 s79, 0x20000'),
                 mk('v_lshrrev_b32 v1, 6, v0'), mk('s_nop 0'), mk('v_readfirstlane_b32 s74, v1'), mk('s_nop 4'),
                 mk('s_lshl_b32 s75, s2, 2'), mk('s_add_u32 s74, s74, s75'), mk('s_lshl_b32 s74, s74, 10')]
        j = [j for j, o in enumerate(pro) if o.text.startswith('s_cmp_eq_u32 s66')][-1]
        pro = pro[:2] + setup + stamped(pro[2:j], 'start') + pro[j:]
    if CFG['dbgtime']:
        pro = pro[:2] + [mk('s_memtime s[88:89]'), mk('s_memrealtime s[90:91]'), mk('s_load_dwordx2 s[76:77], s[0:1], 32'),
                         mk('s_mov_b32 s78, 256'), mk('s_mov_b32 s79, 0x20000')] + pro[2:]
        j = [j for j, o in enumerate(pro) if o.text.startswith('s_cmp_eq_u32 s66')][-1]
        pro = pro[:j] + [mk('s_memtime s[92:93]'), mk('s_memrealtime s[94:95]')] + pro[j:]
        fin = fin + [mk('s_waitcnt vmcnt(0)'), mk('s_memtime s[96:97]'), mk('s_memrealtime s[98:99]'), mk('s_waitcnt lgkmcnt(0)'),
                     mk('s_sub_u32 s96, s96, s88'), mk('s_sub_u32 s98, s98, s90'), mk('s_sub_u32 s92, s92, s88'),
                     mk('s_sub_u32 s94, s94, s90'), mk('v_mov_b32 v0, s96'), mk('v_mov_b32 v1, s98'), mk('v_mov_b32 v2, s92'),
                     mk('v_mov_b32 v3, s94'), mk('s_lshr_b32 s74, s2, 6'), mk('s_lshl_b32 s74, s74, 4'), mk('s_and_b32 s75, s2, 63'),
                     mk(f's_add_u32 s75, s75, s{sW}'), mk('s_cmp_eq_u32 s75, 0'), mk('s_cselect_b32 s74, s74, 0x1000'),
                     mk('buffer_store_dwordx4 v[0:3], off, s[76:79], s74', vmclass='dbg2')]
    traces = []
    for first in 'AB':
        tr = [(o, (0, 0)) for o in pro]
        if first == 'B':
            tr += [(o, (0, 0)) for o in extra]
        typ = first
        for p in range(4):
            tr += [(o, (p, 0)) for o in R[typ, 'rest']]
            tr += [(o, (p, 0)) for o in R[typ, 1]]
            for it in range(3):
                for t in (2, 3, 4, 5):
                    tr += [(o, (p, it)) for o in R[typ, t]]
            for t in (14, 15):
                tr += [(o, (p, 0)) for o in R[typ, t]]
            if p < 3:
                tr += [(o, (p + 1, 0)) for o in R[other(typ), 'S0']]
            tr += [(o, (p + 1, 0)) for o in R[typ, 'epi' if p < 3 else 'fin']]
            typ = other(typ)
        tr += [(o, (4, 0)) for o in fin]
        traces.append(tr)
    resolve_vm_waits(traces)
    global STAMPS
    STAMPS = [[o.name for o, _ in tr if o.vmclass == 'dbg'] for tr in traces]
    nerr = 0
    for first, tr in zip('AB', traces):
        errs = check_trace(tr, first + '-first')
        nerr += len(errs)
    if verbose:
        tot = 0
        for typ in 'AB':
            c = {k: model_cycles(R[typ, k]) for k in ('S0', 'rest', 1, 2, 3, 4, 5, 14, 15, 'epi')}
            s = c['S0'][0] + c['rest'][0] + 3 * sum(c[t][0] for t in (2, 3, 4, 5)) + sum(c[t][0] for t in (1, 14, 15)) + c['epi'][0]
            tot += 2 * s
            print(typ, {k: v for k, v in c.items()}, 'pass', s, file=sys.stderr)
        print('model total', tot, file=sys.stderr)
    code = []
    emit = lambda ops: code.extend(o.render() for o in ops)
    emit(pro)
    emit(extra)
    for typ in 'AB':
        code.append(f'L_{typ}_S0:')
        emit(R[typ, 'S0'])
        emit(R[other(typ), 'epi'])
        code.append(f'L_{typ}_rest:')
        emit(R[typ, 'rest'])
        for t in (1, 2, 3, 4, 5, 14, 15):
            code.append(f'; ---- type {typ} tile {t}')
            if t == 2:
                code.append(f'L_{typ}_loop:')
            emit(R[typ, t])
    emit(R['A', 'fin'])
    emit(R['B', 'fin'])
    emit(fin)
    if CFG['slow']:
        from slow import slow_path
        code += slow_path(sys.modules[__name__])
    code.append('L_end:')
    return code, nerr


HEADER = '''; Attention forward, softmax(Q K^T / sqrt(128)) V, for 512 heads of 848 x 512 x 128 bf16 (generated by my own script).
; a wave that finds a row sum outside that range (or not finite) recomputes its rows of that pass with the true
; @launch grid=(256,1,1) block=(256,1,1) lds=163840
.amdgcn_target "amdgcn-amd-amdhsa--gfx950"
.text
.globl {name}
.p2align 8
.type {name},@function
{name}:
'''
FOOTER = '''s_endpgm
.section .rodata,"a"
.p2align 6
.amdhsa_kernel {name}
  .amdhsa_next_free_vgpr 512
  .amdhsa_next_free_sgpr 102
  .amdhsa_accum_offset 256
  .amdhsa_group_segment_fixed_size 0
  .amdhsa_kernarg_size 48
  .amdhsa_user_sgpr_count 2
  .amdhsa_user_sgpr_kernarg_segment_ptr 1
  .amdhsa_system_sgpr_workgroup_id_x 1
.end_amdhsa_kernel
'''


def generate(path, **cfg):
    CFG.update(cfg)
    code, nerr = build()
    text = HEADER.format(name=NAME) + '\n'.join(c if c.endswith(':') or c.startswith(';') else '    ' + c for c in code) + '\n' + \
        FOOTER.format(name=NAME)
    with open(path, 'w') as f:
        f.write(text)
    if CFG['stamp']:
        import json
        json.dump(STAMPS, open(path + '.json', 'w'))
    import subprocess
    r = subprocess.run(['clang', '-x', 'assembler', '-target', 'amdgcn-amd-amdhsa', '-mcpu=gfx950', '-c', path,
                        '-o', 'gen_check.o'], capture_output=True, text=True)
    if r.returncode:
        print(r.stderr[:2000])
        nerr += 1
    return nerr


if __name__ == '__main__':
    path = sys.argv[1] if len(sys.argv) > 1 else 'standalone__mha_softmax__near_ridge.s'
    cfg = {}
    for a in sys.argv[2:]:
        k, v = a.split('=')
        cfg[k] = int(v)
    n = generate(path, **cfg)
    print('errors:', n)


def show(seq):
    line = ''
    ab = {'v_exp': 'E', 'v_mul': 'M', 'v_cvt': 'C', 'ds_read_b128': 'L', 'ds_read_b64': 't', 'ds_write': 'W', 'buffer_load': 'D',
          'buffer_store': 'S', 's_waitcnt': 'w', 's_barrier': 'B', 'v_smf': '#', 'v_mfma': '|'}
    for o in seq:
        t = o.render()
        for k, v in ab.items():
            if t.startswith(k):
                line += v
                break
        else:
            line += 's' if t.startswith('s_') else 'v'
    return line
```
